```python
import torch

def _softmax(x, axis=-1):
    return torch.softmax(x, dim=axis)
def _gelu(x):
    return torch.nn.functional.gelu(x, approximate="tanh")
def _silu(x):
    return torch.nn.functional.silu(x)
def _sigmoid(x):
    return torch.sigmoid(x)
def _layernorm(x, axis=-1, eps=1e-5):
    m = x.mean(dim=axis, keepdim=True)
    v = x.var(dim=axis, keepdim=True, unbiased=False)
    return (x - m) / torch.sqrt(v + eps)
def _scatter_add(tgt, idx, src, axis=0):
    return tgt.clone().index_add_(axis, idx, src)
def _segment_sum(src, seg, n):
    out = torch.zeros((n,) + src.shape[1:], dtype=src.dtype)
    return out.index_add_(0, seg, src)
def _pad(x, pw):
    flat = tuple(v for pair in reversed(pw) for v in pair)
    return torch.nn.functional.pad(x, flat)

kernel_name = 'gated_mix__sliding_local_dilated__glu_gated_glu__prompt'

def setup_inputs():

    _w = (lambda a: (lambda t: t.to(torch.bfloat16) if t.is_floating_point() else t)(torch.as_tensor(a)))
    def _A_setup():
        B, S, D = 1, 2048, 448
        return {
            "x": _w((lambda *s: torch.randn(*s, dtype=torch.bfloat16) * 0.05)(B, S, D)),
            "wqkv": _w((lambda *s: torch.randn(*s, dtype=torch.bfloat16) * 0.8)(D, 3 * D)),
            "wo": _w((lambda *s: torch.randn(*s, dtype=torch.bfloat16) * 0.05)(D, D)),
        }
    _A_in = _A_setup()

    def _B_setup():
        B, S, D, F = 1, 2048, 448, 1792
        return {
            "x": _w((lambda *s: torch.randn(*s, dtype=torch.bfloat16) * 0.05)(B, S, D)),
            "w_gate": _w((lambda *s: torch.randn(*s, dtype=torch.bfloat16) * 1.6)(D, F)),
            "w_up": _w((lambda *s: torch.randn(*s, dtype=torch.bfloat16) * 0.1)(D, F)),
            "w_down": _w((lambda *s: torch.randn(*s, dtype=torch.bfloat16) * 0.1)(F, D)),
        }
    _B_in = _B_setup()

    return {
        "A_x": _A_in["x"],
        "A_wqkv": _A_in["wqkv"],
        "A_wo": _A_in["wo"],
        "B_x": _B_in["x"],
        "B_w_gate": _B_in["w_gate"],
        "B_w_up": _B_in["w_up"],
        "B_w_down": _B_in["w_down"],
        "gate_w": _w((lambda *s: torch.randn(*s, dtype=torch.bfloat16) * 0.05)(448) * 16.0),
    }

def reference(A_x, A_wqkv, A_wo, B_x, B_w_gate, B_w_up, B_w_down, gate_w):
    def _A_ref(x, wqkv, wo):
        B, S, D = x.shape
        H = 16; Dh = D // H
        W, dil = 8, 2
        qkv = (lambda x, *d: x.permute(*d))((x @ wqkv).reshape(B, S, 3, H, Dh), 2, 0, 3, 1, 4)
        q, k, v = qkv[0], qkv[1], qkv[2]
        scale = Dh ** -0.5
        pos = torch.arange(S)
        off = torch.arange(W) * dil
        idx = pos[:, None] - off[None, :]
        mask = idx >= 0
        idx_c = torch.where(mask, idx, 0).reshape(-1)
        kg = k[:, :, idx_c, :].reshape(B, H, S, W, Dh)
        vg = v[:, :, idx_c, :].reshape(B, H, S, W, Dh)
        logits = torch.einsum("bhsd,bhswd->bhsw", q, kg) * scale
        logits = torch.where(mask[None, None, :, :], logits, -1e9)
        attn = _softmax(logits, axis=-1)
        o = torch.einsum("bhsw,bhswd->bhsd", attn, vg)
        return (lambda x, *d: x.permute(*d))(o, 0, 2, 1, 3).reshape(B, S, D) @ wo

    def _B_ref(x, w_gate, w_up, w_down):
        g = torch.einsum("bsd,df->bsf", x, w_gate)
        u = torch.einsum("bsd,df->bsf", x, w_up)
        h = _sigmoid(g) * u
        return torch.einsum("bsf,fd->bsd", h, w_down)

    x = A_x
    g = _sigmoid((x * gate_w).sum(-1, keepdims=True))
    a = _A_ref(x, A_wqkv, A_wo)
    b = _B_ref(x, B_w_gate, B_w_up, B_w_down)
    return g * a + (1 - g) * b
```

```python
import re

def R(kind, lo, n=1):
    return [f"{kind}{lo+i}" for i in range(n)]
def rng(kind, lo, n):
    return f"{kind}{lo}" if n == 1 else f"{kind}[{lo}:{lo+n-1}]"

class Reg:
    def __init__(s, kind, lo, n=1):
        s.kind, s.lo, s.n = kind, lo, n
    def __str__(s): return rng(s.kind, s.lo, s.n)
    def regs(s): return R(s.kind, s.lo, s.n)
    def sub(s, off, n=1):
        assert off + n <= s.n
        return Reg(s.kind, s.lo + off, n)
    def __getitem__(s, i): return s.sub(i, 1)
def V(lo, n=1): return Reg('v', lo, n)
def A(lo, n=1): return Reg('a', lo, n)
def S(lo, n=1): return Reg('s', lo, n)

TRANS = ("v_exp_f32", "v_rcp_f32", "v_log_f32", "v_rsq_f32", "v_sqrt_f32")

class Ins:
    __slots__ = ("text", "kind", "rd", "wr", "srcC", "tag", "passes", "states")
    def __init__(s, text, kind, rd=(), wr=(), srcC=(), passes=0, states=1):
        s.text, s.kind, s.rd, s.wr, s.srcC, s.passes, s.states = text, kind, set(rd), set(wr), set(srcC), passes, states

def _regs(x):
    if isinstance(x, Reg): return x.regs()
    if isinstance(x, str) and x in ("vcc", "exec", "m0"): return [x]
    return []

class Prog:
    def __init__(s):
        s.ins = []
        s.vm = []
        s.lg = []
        s.vm_done = 0
        s.lg_done = 0
    def raw(s, text, kind="other", rd=(), wr=(), **kw):
        i = Ins(text, kind, rd, wr, **kw); s.ins.append(i); return i
    def label(s, name): s.raw(name + ":", "label", states=0)
    def comment(s, t): s.raw("; " + t, "label", states=0)
    def salu(s, op, dst, *src):
        rd = [r for x in src for r in _regs(x)]
        s.raw(f"{op} {dst}, " + ", ".join(str(x) for x in src), "salu", rd, _regs(dst))
    def s_nop(s, n): s.raw(f"s_nop {n}", "nop", states=n + 1)
    def valu(s, op, dst, *src, extra_rd=(), extra_wr=()):
        rd = [r for x in src for r in _regs(x)] + list(extra_rd)
        for x in src:
            if isinstance(x, str) and x.startswith("-v"): rd.append(x[1:])
        kind = "trans" if op.split("_e")[0] in TRANS or op in TRANS else "valu"
        if op.startswith("v_dot2"): kind = "dot"
        if op.startswith("v_permlane"): kind = "permlane"; rd += _regs(dst); extra_wr = list(extra_wr) + _regs(src[0])
        if op.startswith("v_readfirstlane"): kind = "readlane"
        s.raw(f"{op} {dst}, " + ", ".join(str(x) for x in src), kind, rd, _regs(dst) + list(extra_wr))
    def mfma(s, d, a, b, c, op="v_mfma_f32_32x32x16_bf16"):
        s.raw(f"{op} {d}, {a}, {b}, {c}", "mfma", _regs(a) + _regs(b), _regs(d), srcC=_regs(c), passes=8)
    def ds_read(s, op, dst, addr, off, tag=None):
        assert 0 <= off <= 65535, off
        s.raw(f"{op} {dst}, {addr} offset:{off}", "ds", _regs(addr), _regs(dst)); s.lg.append(tag); return len(s.lg) - 1
    def ds_write(s, op, addr, src, off, tag=None):
        assert 0 <= off <= 65535, off
        s.raw(f"{op} {addr}, {src} offset:{off}", "ds", _regs(addr) + _regs(src)); s.lg.append(tag); return len(s.lg) - 1
    def dma(s, voff, srd, soff, tag=None, flags=""):
        s.raw(f"buffer_load_dwordx4 {voff}, {srd}, {soff} offen lds{flags}", "dma", _regs(voff) + _regs(srd) + _regs(soff) + ["m0"]); s.vm.append(tag); return len(s.vm) - 1
    def vload(s, op, dst, voff, srd, soff, off=0, tag=None, flags=""):
        o = f" offset:{off}" if off else ""
        s.raw(f"{op} {dst}, {voff}, {srd}, {soff} offen{o}{flags}", "vmem", _regs(voff) + _regs(srd) + _regs(soff), _regs(dst)); s.vm.append(tag); return len(s.vm) - 1
    def vstore(s, op, src, voff, srd, soff, off=0, tag=None, flags=""):
        o = f" offset:{off}" if off else ""
        i = s.raw(f"{op} {src}, {voff}, {srd}, {soff} offen{o}{flags}", "store", _regs(voff) + _regs(srd) + _regs(soff) + _regs(src))
        i.tag = set(_regs(src)); s.vm.append(tag); return len(s.vm) - 1
    def wait(s, vm=None, lg=None):
        parts = []
        if vm is not None and vm >= s.vm_done:
            n = len(s.vm) - 1 - vm
            assert n <= 63, n
            parts.append(f"vmcnt({n})"); s.vm_done = vm + 1
        if lg is not None and lg >= s.lg_done:
            n = len(s.lg) - 1 - lg
            assert n <= 15, n
            parts.append(f"lgkmcnt({n})"); s.lg_done = lg + 1
        if parts: s.raw("s_waitcnt " + " ".join(parts), "wait")
    def wait_all(s, vm=True, lg=True):
        s.wait(vm=len(s.vm) - 1 if vm and s.vm else None, lg=len(s.lg) - 1 if lg and s.lg else None)
    def barrier(s): s.raw("s_barrier", "other")
    def check_outstanding(s):
        assert len(s.vm) - s.vm_done <= 63, ("vm outstanding", len(s.vm) - s.vm_done)
        assert len(s.lg) - s.lg_done <= 15, ("lg outstanding", len(s.lg) - s.lg_done)
    def finalize(s):
        out = []
        VAL = ("valu", "trans", "dot", "permlane", "readlane")
        def need(prev, cur):
            n = 0
            pw, pr = prev.wr, prev.rd
            cr, cw = cur.rd | cur.srcC, cur.wr
            raw = pw & cr
            waw = pw & cw
            if prev.kind == "mfma":
                if cur.kind == "mfma":
                    if pw & cur.rd: n = max(n, 12)
                    if pw & cur.srcC and pw != cur.srcC: n = max(n, 10)
                    if waw and not (pw & cur.srcC): n = max(n, 12)
                elif raw or waw: n = max(n, 12)
                if cur.kind in VAL and (prev.srcC & cw): n = max(n, 7)
            if prev.kind in VAL:
                vw = {r for r in pw if r[0] in "va" and r != "vcc"}
                sw = pw - vw
                if cur.kind == "mfma" and (vw & cr): n = max(n, 2)
                if prev.kind == "trans" and cur.kind in VAL and cur.kind != "trans" and (vw & cr): n = max(n, 1)
                if prev.kind == "trans" and cur.kind == "trans" and (vw & cr): n = max(n, 1)
                if prev.kind == "dot" and (vw & (cr | cw)) and cur.kind != "dot": n = max(n, 3)
                if cur.kind == "permlane" and (vw & cr): n = max(n, 2)
                if cur.kind == "readlane" and (vw & cr): n = max(n, 1)
                if sw & cr:
                    if cur.kind in ("vmem", "store", "dma"): n = max(n, 5)
                    elif cur.kind in VAL: n = max(n, 2)
                    elif cur.kind == "salu": n = max(n, 1)
            if prev.kind == "salu" and "m0" in pw and cur.kind == "dma": n = max(n, 1)
            if prev.kind == "store" and (prev.tag & cw): n = max(n, 2)
            return n
        for cur in s.ins:
            if cur.kind not in ("label",):
                dist = 0; pad = 0
                for prev in reversed(out):
                    if dist >= 12: break
                    if prev.kind == "label": continue
                    k = need(prev, cur)
                    if k > dist: pad = max(pad, k - dist)
                    dist += prev.states
                while pad > 0:
                    k = min(pad, 16)
                    out.append(Ins(f"s_nop {k-1}", "nop", states=k)); pad -= k
            out.append(cur)
        return "\n".join(("" if i.kind == "label" and not i.text.startswith(";") else "    ") + i.text for i in out) + "\n"

def kd(name, vgpr, acc, sgpr=102):
    return f""".p2align 6
.amdhsa_kernel {name}
  .amdhsa_next_free_vgpr {vgpr}
  .amdhsa_next_free_sgpr {sgpr}
  .amdhsa_accum_offset {acc}
  .amdhsa_group_segment_fixed_size 0
  .amdhsa_kernarg_size 88
  .amdhsa_user_sgpr_count 2
  .amdhsa_user_sgpr_kernarg_segment_ptr 1
  .amdhsa_system_sgpr_workgroup_id_x 1
.end_amdhsa_kernel
"""
```

```python
from fw import *
import struct
def f2u(x): return struct.unpack("<I", struct.pack("<f", x))[0]
LOG2E = 1.4426950408889634
X_BYTES = 2048 * 896
AF_TILE = 144 * 1024
AF_BYTES = 64 * AF_TILE
GL_OFF = AF_BYTES
sX, sW1, sW2, sWS, sGL = S(40, 4), S(44, 4), S(48, 4), S(52, 4), S(56, 4)
ST = {"flags": ""}

def srd(P, d, lo, hi, nbytes):
    P.salu("s_mov_b32", d[0], lo); P.salu("s_mov_b32", d[1], hi)
    P.salu("s_mov_b32", d[2], nbytes); P.salu("s_mov_b32", d[3], "0x00020000")

def x_dma_voff(P, dst, vl, sw, t0, t1, t2):
    P.valu("v_lshrrev_b32", t0, 3, vl)
    P.salu("s_lshl_b32", S(5), sw, 3)
    P.valu("v_add_u32", t0, S(5), t0)
    P.valu("v_lshrrev_b32", t1, 1, t0)
    P.valu("v_and_b32", t1, 7, t1)
    P.valu("v_and_b32", t2, 7, vl)
    P.valu("v_xor_b32", t1, t1, t2)
    P.valu("v_lshlrev_b32", t1, 4, t1)
    P.valu("v_mul_u32_u24", t0, 1792, t0)
    P.valu("v_add_u32", dst, t0, t1)

def x_read_addrs(P, dsts, vm, vhalf, t0, t1, rowsub=0):
    P.valu("v_lshrrev_b32", t0, 1, vm)
    P.valu("v_and_b32", t0, 7, t0)
    P.valu("v_xor_b32", t0, t0, vhalf)
    P.valu("v_lshlrev_b32", t1, 7, vm)
    if rowsub: P.valu("v_subrev_u32", t1, rowsub * 128, t1)
    for ks in range(4):
        P.valu("v_xor_b32", dsts[ks], 2 * ks, t0)
        P.valu("v_lshlrev_b32", dsts[ks], 4, dsts[ks])
        P.valu("v_add_u32", dsts[ks], dsts[ks], t1)

class Stream:
    def __init__(s, P, LA, valu_budget=20):
        s.P, s.LA, s.slots = P, LA, []
        s.dq = []
        s.vq = []
        s.budget = valu_budget
    def add(s, mfma, reads=(), pre=None, post=None):
        s.slots.append(dict(mfma=mfma, reads=list(reads), pre=pre, post=post))
    def run(s, dma_per_slot=1):
        P, n = s.P, len(s.slots)
        last_rd = [None] * n
        for i in range(n + s.LA):
            j = i - s.LA
            if j >= 0:
                sl = s.slots[j]
                if last_rd[j] is not None: P.wait(lg=last_rd[j])
                sl["mfma"]()
                if sl["post"]: sl["post"](j)
            used = 0
            if i < n:
                sl = s.slots[i]
                if sl["pre"]: sl["pre"]()
                for r in sl["reads"]:
                    last_rd[i] = r(); used += 4
                P.check_outstanding()
            k = dma_per_slot if j >= 0 else 99
            while s.dq and k > 0:
                s.dq.pop(0)(); k -= 1; used += 8
                P.check_outstanding()
            while s.vq and s.vq[0][2] <= j and used + s.vq[0][0] <= s.budget + (4 if used == 0 else 0):
                c, fn, _ = s.vq.pop(0); fn(); used += c
    def drain(s):
        while s.dq: s.dq.pop(0)()
        while s.vq: s.vq.pop(0)[1]()

def gen_glu():
    P = Prog()
    sw, sw1k, stmp, su, sj = S(3), S(4), S(6), S(7), S(8)
    swb, sst = S(9), S(10)
    TB = [S(60 + i) for i in range(11)]
    vl, vm_, vhalf = V(1), V(2), V(3)
    t0, t1, t2 = V(4), V(5), V(6)
    vXd, vGd, vUd, vL16 = V(8), V(9), V(10), V(11)
    vXr = [[V(12 + 4 * b + k) for k in range(4)] for b in range(3)]
    vWr = [V(24 + b) for b in range(3)]
    ACC = [V(32 + 16 * i, 16) for i in range(6)]
    XB = [V(128 + 4 * i, 4) for i in range(8)]
    WF = [A(4 * i, 4) for i in range(28)]
    P.s_nop(1)
    P.salu("s_mul_i32", S(5), S(7), 171)
    P.salu("s_lshr_b32", S(5), S(5), 10)
    P.salu("s_mul_i32", stmp, S(5), 6)
    P.salu("s_sub_u32", sj, S(7), stmp)
    P.salu("s_mov_b32", su, S(5))
    srd(P, sW1, S(24), S(25), 448 * 3584)
    srd(P, sW2, S(26), S(27), 448 * 3584)
    x_dma_voff(P, vXd, vl, sw, t0, t1, t2)
    P.valu("v_lshrrev_b32", t0, 3, vl)
    P.valu("v_bfe_u32", t1, vl, 4, 1)
    P.valu("v_bfe_u32", t2, vl, 1, 2)
    P.valu("v_xor_b32", t1, t1, t2)
    P.valu("v_mul_u32_u24", t0, 3584, t0)
    P.valu("v_and_b32", t2, 1, vl)
    P.valu("v_lshl_add_u32", t0, t2, 4, t0)
    P.valu("v_lshl_add_u32", vGd, t1, 5, t0)
    P.valu("v_xor_b32", t1, 2, t1)
    P.valu("v_lshl_add_u32", vUd, t1, 5, t0)
    P.salu("s_mul_i32", swb, sw, 8 * 3584)
    P.salu("s_lshl_b32", stmp, su, 7)
    P.salu("s_add_u32", swb, swb, stmp)
    P.salu("s_mul_i32", S(11), sj, 11)
    for i in range(11):
        P.salu("s_add_u32", S(12), S(11), i)
        P.salu("s_lshr_b32", S(13), S(12), 1)
        P.salu("s_lshl_b32", S(13), S(13), 6)
        P.salu("s_and_b32", S(12), S(12), 1)
        P.salu("s_add_u32", S(12), S(12), S(13))
        P.salu("s_mul_i32", TB[i], S(12), 896)
    P.salu("s_mul_i32", sst, S(11), AF_TILE)
    P.salu("s_lshl_b32", S(12), su, 2)
    P.salu("s_add_u32", S(12), S(12), sw)
    P.salu("s_add_u32", S(12), S(12), 32)
    P.salu("s_lshl_b32", S(12), S(12), 10)
    P.salu("s_add_u32", sst, sst, S(12))

    pos = 0; items = []
    for c in range(7):
        items.append([(pos + b) % 40 for b in range(8)]); pos += 8
    for t in range(4, 11):
        items.append([(pos + b) % 40 for b in range(7)]); pos += 7
    owner = {}; need_free = []
    for n, blks in enumerate(items):
        need_free.append(max([owner.get(b, -1) for b in blks]))
        for b in blks: owner[b] = n
    last_vm = {}
    def dma_ops(n):
        ops = []
        def one(blk, srd_, voff, sbase, const):
            def f():
                P.salu("s_add_u32", "m0", sw1k, blk * 4096)
                P.salu("s_add_u32", stmp, sbase, const)
                last_vm[n] = P.dma(voff, srd_, stmp)
            return f
        b = items[n]
        if n < 7:
            for h in range(2):
                ops.append(one(b[2 * h], sW1, vGd, swb, (n * 64 + 32 * h) * 3584))
                ops.append(one(b[2 * h + 1], sW2, vUd, swb, (n * 64 + 32 * h) * 3584))
                for t in (2 * h, 2 * h + 1):
                    ops.append(one(b[4 + t], sX, vXd, TB[t], n * 128))
        else:
            for kc in range(7):
                ops.append(one(b[kc], sX, vXd, TB[n - 3], kc * 128))
        return ops
    issued = set()
    for n in range(len(items)):
        if need_free[n] < 0:
            for f in dma_ops(n): f()
            issued.add(n)
    P.valu("v_lshlrev_b32", vL16, 4, vl)
    x_read_addrs(P, vXr[0], vm_, vhalf, t0, t1)
    for b in (1, 2):
        for k in range(4): P.valu("v_add_u32", vXr[b][k], 65536 * b, vXr[0][k])
    P.valu("v_bfe_u32", t0, vl, 4, 1)
    P.valu("v_bfe_u32", t1, vl, 3, 1)
    P.valu("v_lshl_add_u32", t1, t0, 1, t1)
    P.valu("v_xor_b32", t1, sw, t1)
    P.valu("v_lshlrev_b32", t1, 5, t1)
    P.valu("v_lshl_add_u32", t1, t0, 12, t1)
    P.valu("v_bfe_u32", t0, vl, 2, 2)
    P.valu("v_lshl_add_u32", t0, vhalf, 3, t0)
    P.valu("v_lshl_add_u32", t1, t0, 7, t1)
    P.valu("v_and_b32", t0, 3, vl)
    P.valu("v_lshl_add_u32", vWr[0], t0, 3, t1)
    for b in (1, 2): P.valu("v_add_u32", vWr[b], 65536 * b, vWr[0])

    LA = 6
    st = Stream(P, LA)
    def pre_item(n):
        def f():
            P.wait(vm=last_vm[n]); P.barrier()
            for m in range(len(items)):
                if m not in issued and need_free[m] <= n - 2 and all(k in issued for k in range(m)):
                    st.dq.extend(dma_ops(m)); issued.add(m)
        return f
    def rd_x(buf, blk, ks):
        a = blk * 4096
        return lambda: P.ds_read("ds_read_b128", buf, vXr[a >> 16][ks], a & 0xFFFF)
    def rd_w(n, blk, ks, rd):
        a = blk * 4096 + (ks & 1) * 2048 + rd * 512
        base = 0 if a + 8192 <= 65536 else (a >> 16)
        base = a >> 16
        return lambda: P.ds_read("ds_read_b64_tr_b16", WF[n].sub(2 * rd, 2), vWr[base], a & 0xFFFF)
    def epilogue(tile, slot_idx):
        acc = ACC[tile % 6] if tile < 6 else ACC[tile - 6]
        ops = []
        for e in range(8): ops.append((4, lambda e=e: P.valu("v_mul_f32", acc[e], hex(f2u(-LOG2E)), acc[e])))
        for e in range(8): ops.append((8, lambda e=e: P.valu("v_exp_f32", acc[e], acc[e])))
        for e in range(8): ops.append((4, lambda e=e: P.valu("v_add_f32", acc[e], 1.0, acc[e])))
        for e in range(8): ops.append((8, lambda e=e: P.valu("v_rcp_f32", acc[e], acc[e])))
        for e in range(8): ops.append((4, lambda e=e: P.valu("v_mul_f32", acc[e], acc[e], acc[8 + e])))
        for e in range(4): ops.append((4, lambda e=e: P.valu("v_cvt_pk_bf16_f32", acc[e], acc[2 * e], acc[2 * e + 1])))
        def store():
            P.salu("s_add_u32", stmp, sst, tile * AF_TILE)
            P.vstore("buffer_store_dwordx4", acc.sub(0, 4), vL16, sWS, stmp, flags=ST["flags"])
        ops.append((8, store))
        for c, f in ops: st.vq.append((c, f, slot_idx + 2))
    xb = 0
    for c in range(7):
        b = items[c]
        for ks in range(4):
            n = 4 * c + ks
            for t in range(4):
                buf = XB[xb % 8]; xb += 1
                reads = []
                if t == 0: reads += [rd_w(n, b[2 * (ks >> 1)], ks, 0), rd_w(n, b[2 * (ks >> 1)], ks, 1)]
                reads.append(rd_x(buf, b[4 + t], ks))
                mf = (lambda t=t, n=n, buf=buf: P.mfma(ACC[t], WF[n], buf, 0 if n == 0 else ACC[t]))
                post = None
                if n == 27 and t == 3:
                    post = lambda j: [epilogue(tt, j) for tt in range(4)]
                st.add(mf, reads, pre=pre_item(c) if (ks == 0 and t == 0) else None, post=post)
    for tile in range(4, 11):
        b = items[tile + 3]
        acc = ACC[tile % 6]
        for n in range(28):
            buf = XB[xb % 8]; xb += 1
            mf = (lambda n=n, buf=buf, acc=acc: P.mfma(acc, WF[n], buf, 0 if n == 0 else acc))
            post = (lambda j, tile=tile: epilogue(tile, j)) if n == 27 else None
            st.add(mf, [rd_x(buf, b[n >> 2], n & 3)], pre=pre_item(tile + 3) if n == 0 else None, post=post)
    st.run()
    st.drain()
    return P

SCALE_L2E = (28 ** -0.5) * LOG2E
def lane_mask(fn):
    m = 0
    for l in range(64):
        if fn(l & 31, l >> 5): m |= 1 << l
    return m

def gen_att(par):
    P = Prog()
    sw, sw1k, stmp, sp, srb, shd = S(3), S(4), S(6), S(7), S(8), S(9)
    swb, sst = S(10), S(11)
    TB = [S(12), S(13), S(14), S(15), S(38), S(39)]
    MC = [S(60 + 2 * i, 2) for i in range(16)]
    MP = [S(92 + 2 * i, 2) for i in range(4)]
    MP0 = [S(16 + 2 * i, 2) for i in range(4)]
    MH0 = S(24, 2)
    SLOT = 51200
    MISC = 3 * SLOT
    XK, XV = MISC + 1024, MISC + 1024 + 4096
    vl, vm_, vhalf = V(1), V(2), V(3)
    t0, t1, t2 = V(4), V(5), V(6)
    vXd, vWd, vHd, vL16 = V(8), V(9), V(10), V(11)
    vXr = [[V(12 + 4 * b + k) for k in range(4)] for b in range(3)]
    vHr = [[V(24 + 4 * b + k) for k in range(4)] for b in range(3)]
    vGr = [[V(36 + 4 * b + k) for k in range(4)] for b in range(3)]
    vWr = [V(48 + b) for b in range(3)]
    vGF = V(51)
    GD = [V(52 + i) for i in range(4)]
    XG = [V(56, 4), V(60, 4)]; GF = [V(64, 4), V(68, 4)]
    ACC = [V(96 + 16 * i, 16) for i in range(10)]
    WFb = [[A(12 * p + 4 * s_, 4) for s_ in range(3)] for p in range(2)]
    XFb = [[A(24 + 16 * p + 4 * j, 4) for j in range(4)] for p in range(2)]
    P.s_nop(1)
    P.salu("s_lshr_b32", shd, sw, 1)
    srd(P, sW1, S(18), S(19), 448 * 2688)
    srd(P, sW2, S(30), S(31), 896)
    x_dma_voff(P, vXd, vl, sw, t0, t1, t2)
    P.valu("v_lshrrev_b32", t0, 3, vl)
    P.valu("v_bfe_u32", t1, vl, 4, 1)
    P.valu("v_lshlrev_b32", t1, 2, t1)
    P.valu("v_and_b32", t2, 7, vl)
    P.valu("v_xor_b32", t1, t1, t2)
    P.valu("v_mul_u32_u24", t0, 2688, t0)
    P.valu("v_lshl_add_u32", vWd, t1, 4, t0)
    P.salu("s_mul_i32", swb, sw, 8 * 2688)
    P.salu("s_mul_i32", stmp, sp, 112)
    P.salu("s_add_u32", swb, swb, stmp)
    P.salu("s_mul_i32", S(5), srb, 192 * 896)
    for j in range(3):
        for pp in range(2):
            P.salu("s_add_u32", TB[2 * j + pp], S(5), (64 * j + pp) * 896)
    P.valu("v_bfe_u32", t0, vl, 3, 2)
    P.salu("s_lshl_b32", stmp, sw, 2)
    P.salu("s_add_u32", stmp, stmp, 16)
    P.valu("v_add_u32", t0, stmp, t0)
    P.valu("v_and_b32", t1, 7, t0)
    P.valu("v_lshlrev_b32", t1, 1, t1)
    P.valu("v_bfe_u32", t2, t0, 3, 1)
    P.valu("v_sub_u32", t1, t1, t2)
    P.salu("s_mul_i32", stmp, srb, 192)
    P.salu("s_sub_u32", stmp, stmp, 15)
    P.valu("v_add_u32", t1, stmp, t1)
    P.valu("v_max_i32", t1, 0, t1)
    P.valu("v_mul_u32_u24", t1, 896, t1)
    P.valu("v_lshrrev_b32", t0, 1, t0)
    P.valu("v_and_b32", t0, 7, t0)
    P.valu("v_and_b32", t2, 7, vl)
    P.valu("v_xor_b32", t0, t0, t2)
    P.valu("v_lshl_add_u32", vHd, t0, 4, t1)
    P.valu("v_lshlrev_b32", vL16, 4, vl)
    P.salu("s_lshr_b32", S(5), sw1k, 1)
    last_vm = {}
    def dma_ops(c):
        base = (c % 3) * SLOT
        ops = []
        def one(lds, srd_, voff, sbase, const, halo=False):
            def f():
                P.salu("s_add_u32", "m0", S(5) if halo else sw1k, lds)
                if sbase is None: P.salu("s_mov_b32", stmp, const)
                else: P.salu("s_add_u32", stmp, sbase, const)
                if halo: P.raw("s_mov_b32 exec_hi, 0", "salu", wr=["exec"])
                last_vm[c] = P.dma(voff, srd_, stmp)
                if halo: P.raw("s_mov_b32 exec_hi, -1", "salu", wr=["exec"])
            return f
        for i in range(2):
            for sec in range(3):
                ops.append(one(base + sec * 8192 + i * 4096, sW1, vWd, swb, sec * 896 + (c * 64 + 32 * i) * 2688))
            for t in range(3 * i, 3 * i + 3):
                ops.append(one(base + 24576 + t * 4096, sX, vXd, TB[t], c * 128))
        ops.append(one(base + 49152, sX, vHd, None, c * 128, halo=True))
        return ops
    P.salu("s_mov_b32", "m0", MISC)
    P.salu("s_mov_b32", stmp, 0)
    P.dma(vL16, sW2, stmp)
    for c in range(3):
        for f in dma_ops(c): f()
    x_read_addrs(P, vXr[0], vm_, vhalf, t0, t1)
    for k in range(4): P.valu("v_add_u32", vXr[0][k], 24576 + par * 4096, vXr[0][k])
    P.salu("s_mul_i32", stmp, sp, 43)
    P.salu("s_lshr_b32", stmp, stmp, 7)
    P.salu("s_mul_i32", stmp, stmp, 3)
    P.salu("s_sub_u32", stmp, sp, stmp)
    P.salu("s_lshl_b32", S(2), stmp, 13)
    for k in range(4): P.valu("v_add_u32", vGr[0][k], S(2), vXr[0][k])
    P.valu("v_or_b32", t2, 16, vm_)
    x_read_addrs(P, vHr[0], t2, vhalf, t0, t1, rowsub=16)
    for k in range(4): P.valu("v_add_u32", vHr[0][k], 49152, vHr[0][k])
    P.salu("s_mul_i32", stmp, shd, 56)
    P.valu("v_bfe_u32", t0, vl, 4, 1)
    P.valu("v_lshlrev_b32", t0, 5, t0)
    P.valu("v_and_b32", t1, 3, vl)
    P.valu("v_lshl_add_u32", t0, t1, 3, t0)
    P.valu("v_add_u32", t0, stmp, t0)
    P.valu("v_bfe_u32", t1, vl, 3, 1)
    P.valu("v_lshlrev_b32", t1, 6, t1)
    P.valu("v_xor_b32", t0, t0, t1)
    P.valu("v_bfe_u32", t1, vl, 2, 2)
    P.valu("v_lshl_add_u32", t1, vhalf, 3, t1)
    P.valu("v_lshl_add_u32", vWr[0], t1, 7, t0)
    for b in (1, 2):
        for k in range(4):
            P.valu("v_add_u32", vXr[b][k], SLOT * b, vXr[0][k])
            P.valu("v_add_u32", vHr[b][k], SLOT * b, vHr[0][k])
            P.valu("v_add_u32", vGr[b][k], SLOT * b, vGr[0][k])
        P.valu("v_add_u32", vWr[b], SLOT * b, vWr[0])
    P.valu("v_lshlrev_b32", vGF, 4, vhalf)
    P.valu("v_add_u32", vGF, MISC, vGF)
    for i in range(4): P.valu("v_mov_b32", GD[i], 0)
    P.salu("s_add_u32", sGL[0], S(36), GL_OFF)
    P.salu("s_addc_u32", sGL[1], S(37), 0)
    P.salu("s_mov_b32", sGL[3], "0x00020000")
    P.salu("s_lshl_b32", stmp, shd, 3)
    P.salu("s_add_u32", stmp, stmp, sp)
    P.raw(f"s_cmp_lt_u32 {stmp}, 3", "salu", rd=[str(stmp)])
    P.salu("s_cselect_b32", sGL[2], 8192, 0)
    P.salu("s_lshr_b32", S(2), S(2), 13)
    P.salu("s_mul_i32", stmp, srb, 3)
    P.salu("s_add_u32", S(2), S(2), stmp)
    P.salu("s_lshl_b32", S(2), S(2), 8)
    P.salu("s_add_u32", S(2), S(2), par * 128)
    P.salu("s_mul_i32", sst, srb, 6 * AF_TILE)
    P.salu("s_lshl_b32", stmp, sp, 1)
    P.salu("s_add_u32", stmp, stmp, shd)
    P.salu("s_lshl_b32", stmp, stmp, 11)
    P.salu("s_add_u32", sst, sst, stmp)
    P.salu("s_add_u32", sst, sst, par * AF_TILE)
    def setmask(d, m):
        P.salu("s_mov_b32", d[0], hex(m & 0xFFFFFFFF)); P.salu("s_mov_b32", d[1], hex(m >> 32))
    for v in range(16):
        i, r = v >> 2, v & 3
        setmask(MC[v], lane_mask(lambda m, h: 0 <= m - (8 * i + 4 * h + r) <= 7))
    for r in range(4):
        setmask(MP[r], lane_mask(lambda m, h: 4 * h + r > m))
    P.raw(f"s_cmp_eq_u32 {srb}, 0", "salu", rd=[str(srb)])
    for r in range(4):
        P.salu("s_cselect_b64", MP0[r], 0, MP[r])
    setmask(MH0, 0xFFFFFFFF)

    LA = 6
    st = Stream(P, LA)
    def pre_chunk(c):
        def f():
            P.wait(vm=last_vm[c]); P.barrier()
        return f
    def post_chunk(c):
        def f(j):
            if c + 3 < 7:
                P.barrier()
                st.dq.extend(dma_ops(c + 3))
        return f
    for c in range(7):
        sl = c % 3
        for ks in range(4):
            n = 4 * c + ks; pb = n & 1
            W, X = WFb[pb], XFb[pb]
            def rw(sec, rd): return lambda sec=sec, rd=rd, W=W, sl=sl, ks=ks: P.ds_read("ds_read_b64_tr_b16", W[sec].sub(2 * rd, 2), vWr[sl], sec * 8192 + ks * 2048 + rd * 512)
            def rx(j): return lambda j=j, X=X, sl=sl, ks=ks: P.ds_read("ds_read_b128", X[j], vXr[sl][ks], j * 8192)
            rh = lambda X=X, sl=sl, ks=ks: P.ds_read("ds_read_b128", X[3], vHr[sl][ks], 0)
            rg = lambda pb=pb, sl=sl, ks=ks: P.ds_read("ds_read_b128", XG[pb], vGr[sl][ks], 0)
            rf = lambda pb=pb, n=n: P.ds_read("ds_read_b128", GF[pb], vGF, n * 32)
            def dots(j, pb=pb):
                for q in range(4): st.vq.append((8, lambda q=q: P.valu("v_dot2_f32_bf16", GD[q], XG[pb][q], GF[pb][q], GD[q]), j))
            for j in range(3):
                for sec in range(3):
                    acc = ACC[3 * j + sec]
                    reads = []
                    if j == 0: reads += [rw(sec, 0), rw(sec, 1)]
                    if sec == 0: reads.append(rx(j))
                    if j == 1 and sec == 1: reads += [rg, rf]
                    if sec < 2: mf = lambda acc=acc, W=W, X=X, j=j, sec=sec, n=n: P.mfma(acc, W[sec], X[j], 0 if n == 0 else acc)
                    else: mf = lambda acc=acc, W=W, X=X, j=j, n=n: P.mfma(acc, X[j], W[2], 0 if n == 0 else acc)
                    st.add(mf, reads, pre=pre_chunk(c) if (ks == 0 and j == 0 and sec == 0) else None,
                           post=dots if (j == 1 and sec == 1) else None)
            acc = ACC[9]
            if par == 0: mf = lambda acc=acc, W=W, X=X, n=n: P.mfma(acc, W[1], X[3], 0 if n == 0 else acc)
            else: mf = lambda acc=acc, W=W, X=X, n=n: P.mfma(acc, X[3], W[2], 0 if n == 0 else acc)
            st.add(mf, [rh], post=post_chunk(c) if ks == 3 else None)
    st.run()
    st.drain()
    def pack(acc, zero_pad=False):
        for e in range(8): P.valu("v_cvt_pk_bf16_f32", acc[e], acc[2 * e], acc[2 * e + 1])
        if zero_pad:
            for e in (6, 7): P.valu("v_cndmask_b32", acc[e], 0, acc[e], MH0)
    P.valu("v_add_f32", GD[0], GD[0], GD[1]); P.valu("v_add_f32", GD[2], GD[2], GD[3])
    P.valu("v_add_f32", GD[0], GD[0], GD[2]); P.valu("v_mov_b32", GD[1], GD[0])
    H = ACC[9]
    pack(H, zero_pad=(par == 0))
    P.valu("v_permlane32_swap_b32", GD[0], GD[1])
    P.valu("v_add_f32", GD[0], GD[0], GD[1])
    P.valu("v_lshlrev_b32", t0, 2, vm_)
    P.vstore("buffer_store_dword", GD[0], t0, sGL, S(2), flags=ST["flags"])
    P.salu("s_lshl_b32", stmp, shd, 11)
    P.salu("s_add_u32", stmp, stmp, XK)
    P.valu("v_add_u32", t1, stmp, vL16)
    P.salu("s_lshl_b32", stmp, shd, 9)
    P.salu("s_add_u32", stmp, stmp, XV)
    P.valu("v_lshlrev_b32", t2, 3, vl)
    P.valu("v_add_u32", t2, stmp, t2)
    if par == 0:
        P.ds_write("ds_write_b128", t1, H.sub(0, 4), 0)
        P.ds_write("ds_write_b128", t1, H.sub(4, 4), 1024)
    else:
        P.ds_write("ds_write_b64", t2, H.sub(6, 2), 0)
    for j in range(3):
        pack(ACC[3 * j]); pack(ACC[3 * j + 1], zero_pad=True)
    P.wait_all(vm=False); P.barrier()
    if par == 0:
        KH = H.sub(0, 8); VH = H.sub(8, 2)
        rdx = P.ds_read("ds_read_b64", VH, t2, 0); ip0 = 3
    else:
        KH = H.sub(8, 8); VH = H.sub(4, 2)
        P.ds_read("ds_read_b128", KH.sub(0, 4), t1, 0)
        rdx = P.ds_read("ds_read_b128", KH.sub(4, 4), t1, 1024); ip0 = 2
    SC = [V(8, 16), V(40, 16)]; SP = [V(24, 16), V(56, 16)]; O = V(72, 16)
    vNEG, vMX, vT, vC = V(88), V(89), V(90), V(91)
    vL16b = V(92)
    P.valu("v_mov_b32", vL16b, vL16)
    P.valu("v_mov_b32", vNEG, "0xff800000")
    P.valu("v_mov_b32", vC, hex(f2u(SCALE_L2E)))
    Q = [ACC[3 * j].sub(0, 8) for j in range(3)]; K = [ACC[3 * j + 1].sub(0, 8) for j in range(3)]; Vv = [ACC[3 * j + 2].sub(0, 8) for j in range(3)]
    def s_mfma(j):
        b = j & 1
        kp = KH if j == 0 else K[j - 1]
        P.mfma(SC[b], K[j].sub(0, 4), Q[j].sub(0, 4), 0)
        P.mfma(SP[b], kp.sub(0, 4), Q[j].sub(0, 4), 0)
        P.mfma(SC[b], K[j].sub(4, 4), Q[j].sub(4, 4), SC[b])
        P.mfma(SP[b], kp.sub(4, 4), Q[j].sub(4, 4), SP[b])
    def softmax(j):
        b = j & 1
        ip = ip0 if j == 0 else 3
        vals = [SC[b][v] for v in range(16)] + [SP[b][4 * ip + r] for r in range(4)]
        masks = MC + (MP0 if j == 0 else MP)
        for v, m in zip(vals, masks): P.valu("v_cndmask_b32", v, vNEG, v, m)
        P.valu("v_max3_f32", vMX, vals[0], vals[1], vals[2])
        P.valu("v_max3_f32", vT, vals[3], vals[4], vals[5])
        k = 6
        while k < 20:
            tgt = vMX if ((k - 6) // 2) % 2 == 0 else vT
            P.valu("v_max3_f32", tgt, tgt, vals[k], vals[k + 1]); k += 2
        P.valu("v_max_f32", vMX, vMX, vT)
        P.valu("v_mov_b32", vT, vMX)
        P.valu("v_permlane32_swap_b32", vMX, vT)
        P.valu("v_max_f32", vMX, vMX, vT)
        P.valu("v_mul_f32", vMX, vMX, vC)
        for v in vals: P.valu("v_fma_f32", v, v, vC, "-" + str(vMX))
        for v in vals: P.valu("v_exp_f32", v, v)
        P.valu("v_add_f32", vMX, vals[0], vals[1]); P.valu("v_add_f32", vT, vals[2], vals[3])
        for k in range(4, 20):
            tgt = vMX if k % 2 == 0 else vT
            P.valu("v_add_f32", tgt, tgt, vals[k])
        P.valu("v_add_f32", vMX, vMX, vT)
        P.valu("v_mov_b32", vT, vMX)
        P.valu("v_permlane32_swap_b32", vMX, vT)
        P.valu("v_add_f32", vMX, vMX, vT)
        P.valu("v_rcp_f32", vMX, vMX)
        for v in vals: P.valu("v_mul_f32", v, v, vMX)
        for e in range(8): P.valu("v_cvt_pk_bf16_f32", SC[b][e], SC[b][2 * e], SC[b][2 * e + 1])
        for e in range(2): P.valu("v_cvt_pk_bf16_f32", SP[b][e] if ip else None, SP[b][4 * ip + 2 * e], SP[b][4 * ip + 2 * e + 1])
    def pv(j, Oacc):
        b = j & 1
        vp = VH if j == 0 else Vv[j - 1].sub(6, 2)
        P.mfma(Oacc, Vv[j].sub(0, 4), SC[b].sub(0, 4), 0)
        P.mfma(Oacc, Vv[j].sub(4, 4), SC[b].sub(4, 4), Oacc)
        P.mfma(Oacc, vp, SP[b].sub(0, 2), Oacc, op="v_mfma_f32_32x32x8_bf16")
    def o_store(j, Oacc):
        pack(Oacc, zero_pad=True)
        P.salu("s_add_u32", stmp, sst, 2 * j * AF_TILE)
        P.vstore("buffer_store_dwordx4", Oacc.sub(0, 4), vL16b, sWS, stmp, flags=ST["flags"])
        P.vstore("buffer_store_dwordx4", Oacc.sub(4, 4), vL16b, sWS, stmp, off=1024, flags=ST["flags"])
    s_mfma(1)
    P.wait(lg=rdx)
    s_mfma(0)
    for j in range(3): pack(ACC[3 * j + 2])
    softmax(1)
    pv(1, O)
    softmax(0)
    O0 = ACC[3]
    pv(0, O0)
    o_store(1, O)
    s_mfma(2)
    o_store(0, O0)
    softmax(2)
    pv(2, O)
    o_store(2, O)
    return P

def gen_k1(name):
    P = Prog()
    P.raw("s_cmp_ge_u32 s2, 256", "salu"); P.raw(f"s_cbranch_scc1 {name}_done")
    P.raw("s_load_dwordx16 s[16:31], s[0:1], 0")
    P.raw("s_load_dwordx2 s[36:37], s[0:1], 80")
    P.valu("v_lshrrev_b32", V(4), 6, V(0))
    P.valu("v_and_b32", V(1), 63, V(0))
    P.valu("v_and_b32", V(2), 31, V(0))
    P.valu("v_readfirstlane_b32", S(3), V(4))
    P.valu("v_bfe_u32", V(3), V(0), 5, 1)
    P.salu("s_and_b32", S(7), S(2), 7)
    P.salu("s_lshr_b32", S(8), S(2), 3)
    P.salu("s_lshl_b32", S(4), S(3), 10)
    P.raw("s_waitcnt lgkmcnt(0)")
    srd(P, sX, S(16), S(17), X_BYTES)
    srd(P, sWS, S(36), S(37), AF_BYTES)
    P.raw("s_cmp_lt_u32 s8, 11", "salu"); P.raw(f"s_cbranch_scc1 {name}_att")
    P.salu("s_mul_i32", S(7), S(7), 21)
    P.salu("s_add_u32", S(7), S(7), S(8))
    P.salu("s_sub_u32", S(7), S(7), 11)
    txt = P.finalize()
    txt += gen_glu().finalize() + "    s_endpgm\n"
    txt += f"{name}_att:\n    s_and_b32 s5, s3, 1\n    s_cmp_eq_u32 s5, 1\n    s_cbranch_scc1 {name}_att1\n"
    txt += gen_att(0).finalize() + "    s_endpgm\n"
    txt += f"{name}_att1:\n" + gen_att(1).finalize()
    txt += f"{name}_done:\n    s_endpgm\n"
    return txt
```

```python
from fw import *
from gen1 import srd, f2u, LOG2E, AF_TILE, AF_BYTES, GL_OFF, Stream
OUT_BYTES = 2048 * 896

def gen_k2_body(P, ld_flags=""):
    sw, stmp, sspan, scb = S(3), S(6), S(7), S(8)
    sWO, sWD, sA, sGL, sO = S(40, 4), S(44, 4), S(48, 4), S(52, 4), S(56, 4)
    sLds, sBo, sBd, sA0, sA1 = S(9), S(10), S(11), S(12), S(13)
    vl, vm_, vhalf = V(1), V(2), V(3)
    t0, t1, t2 = V(4), V(5), V(6)
    vBd, vL16 = V(8), V(9)
    vBr = [V(10), V(11)]
    vG = [V(12), V(13)]
    ACCa = [V(32 + 16 * i, 16) for i in range(4)]
    ACCb = [V(96 + 16 * i, 16) for i in range(4)]
    BF = [[V(160 + 8 * p + 4 * ct, 4) for ct in range(2)] for p in range(4)]
    D = 14
    AF = [[A(8 * d + 4 * r, 4) for r in range(2)] for d in range(D + 2)]
    srd(P, sWO, S(20), S(21), 448 * 896)
    srd(P, sWD, S(28), S(29), 1792 * 896)
    srd(P, sA, S(36), S(37), AF_BYTES)
    P.valu("v_lshrrev_b32", t0, 3, vl)
    P.valu("v_bfe_u32", t1, vl, 4, 1)
    P.valu("v_lshlrev_b32", t1, 2, t1)
    P.valu("v_and_b32", t2, 7, vl)
    P.valu("v_xor_b32", t1, t1, t2)
    P.valu("v_mul_u32_u24", t0, 896, t0)
    P.valu("v_lshl_add_u32", vBd, t1, 4, t0)
    P.valu("v_lshlrev_b32", vL16, 4, vl)
    P.salu("s_mul_i32", sLds, sw, 40960)
    P.salu("s_lshl_b32", stmp, scb, 7)
    P.salu("s_mul_i32", sBo, sw, 112 * 896)
    P.salu("s_add_u32", sBo, sBo, stmp)
    P.salu("s_mul_i32", sBd, sw, 448 * 896)
    P.salu("s_add_u32", sBd, sBd, stmp)
    P.salu("s_mul_i32", sA0, sspan, 2 * AF_TILE)
    P.salu("s_mul_i32", stmp, sw, 28 * 1024)
    P.salu("s_add_u32", sA1, sA0, stmp)
    P.salu("s_add_u32", sA1, sA1, 32 * 1024)
    P.salu("s_lshl_b32", stmp, sw, 13)
    P.salu("s_add_u32", sA0, sA0, stmp)
    NB = 40
    nblk = 15 + 56
    ksteps = [("o", 28 * hd + 16 * s_) for hd in range(4) for s_ in range(2)] + [("h", 16 * i) for i in range(28)]
    def blocks_of(k):
        kind, r0 = ksteps[k]
        lo, hi = r0 // 8, (r0 + 15) // 8
        return [b + (0 if kind == "o" else 15) for b in range(lo, hi + 1)]
    def slot(b): return b if b < 15 else (16 + (b - 15)) % NB
    last_use = {}
    for k in range(36):
        for b in blocks_of(k): last_use[b] = k
    occupant = {}
    need = {}
    for b in range(nblk):
        s_ = slot(b)
        need[b] = last_use[occupant[s_]] if s_ in occupant else -1
        occupant[s_] = b
    vm_b = {}; vm_a = {}
    def dma_b(b):
        def f():
            P.salu("s_add_u32", "m0", sLds, slot(b) * 1024)
            if b < 15:
                P.salu("s_add_u32", stmp, sBo, b * 8 * 896); vm_b[b] = P.dma(vBd, sWO, stmp)
            else:
                P.salu("s_add_u32", stmp, sBd, (b - 15) * 8 * 896); vm_b[b] = P.dma(vBd, sWD, stmp)
        return f
    def load_a(k):
        def f():
            base, kk = (sA0, k) if k < 8 else (sA1, k - 8)
            for r in range(2):
                P.salu("s_add_u32", stmp, base, r * AF_TILE + kk * 1024)
                vm_a[k] = P.vload("buffer_load_dwordx4", AF[k % (D + 2)][r], vL16, sA, stmp, flags=ld_flags)
        return f
    issued_b = set(); issued_a = set()
    def issue_upto(kdone):
        ops = []
        for k in range(36):
            if k > kdone + 1 + D: break
            ok = True
            for b in blocks_of(k):
                if b not in issued_b:
                    if need[b] <= kdone: ops.append(dma_b(b)); issued_b.add(b)
                    else: ok = False
            if not ok: break
            if k not in issued_a: ops.append(load_a(k)); issued_a.add(k)
        return ops
    return dict(locals())

def gen_k2_main(P, E, pre_issue=True):
    globals_ = E
    (sw, stmp, sspan, scb, sGL, sO, sLds, vl, vm_, vhalf, t0, t1, t2, vL16, vBr, vG, ACCa, ACCb, BF, AF, D, ksteps, blocks_of, slot, vm_b, vm_a, issue_upto) = [
        E[k] for k in "sw stmp sspan scb sGL sO sLds vl vm_ vhalf t0 t1 t2 vL16 vBr vG ACCa ACCb BF AF D ksteps blocks_of slot vm_b vm_a issue_upto".split()]
    ld_flags = E["ld_flags"]
    for f in issue_upto(-1): f()
    P.salu("s_add_u32", sGL[0], S(36), GL_OFF); P.salu("s_addc_u32", sGL[1], S(37), 0)
    P.salu("s_mov_b32", sGL[2], 8192); P.salu("s_mov_b32", sGL[3], "0x00020000")
    srd(P, sO, S(32), S(33), OUT_BYTES)
    P.valu("v_bfe_u32", t0, vl, 4, 1)
    P.valu("v_lshlrev_b32", t0, 5, t0)
    P.valu("v_and_b32", t1, 3, vl)
    P.valu("v_lshl_add_u32", t0, t1, 3, t0)
    P.valu("v_bfe_u32", t1, vl, 3, 1)
    P.valu("v_lshl_add_u32", t0, t1, 6, t0)
    P.valu("v_bfe_u32", t1, vl, 2, 2)
    P.valu("v_lshl_add_u32", t1, vhalf, 2, t1)
    P.valu("v_lshl_add_u32", t0, t1, 7, t0)
    P.valu("v_add_u32", vBr[0], sLds, t0)
    P.valu("v_xor_b32", vBr[1], 64, vBr[0])
    LA = 4
    st = Stream(P, LA)
    for k in range(36):
        kind, r0 = ksteps[k]
        b0 = blocks_of(k)[0]
        off = slot(b0) * 1024 + (r0 % 8) * 128
        acc = ACCa if kind == "o" else ACCb
        first = k in (0, 8)
        B = BF[k % 4]; Aa = AF[k % (D + 2)]
        def pre(k=k):
            P.wait(vm=max(vm_b[b] for b in blocks_of(k)))
            if k % 4 == 0: mid_stamp(P, list(range(60, 96, 2)))
        def rb(ct, rd, B=B, off=off): return lambda: P.ds_read("ds_read_b64_tr_b16", B[ct].sub(2 * rd, 2), vBr[ct], off + rd * 1024)
        for q in range(4):
            r, ct = q >> 1, q & 1
            a = acc[2 * r + ct]
            def mf(a=a, B=B, Aa=Aa, r=r, ct=ct, first=first, k=k, q=q):
                if q == 0: P.wait(vm=vm_a[k])
                P.mfma(a, B[ct], Aa[r], 0 if first else a)
            reads = [rb(ct, 0), rb(ct, 1)] if r == 0 else []
            post = (lambda j, k=k: st.dq.extend(issue_upto(k))) if q == 3 else None
            st.add(mf, reads, pre=pre if q == 0 else None, post=post)
        if k == 20:
            def gl():
                P.valu("v_lshlrev_b32", t0, 2, vm_)
                P.salu("s_lshl_b32", stmp, sspan, 8)
                E["vm_g0"] = P.vload("buffer_load_dword", vG[0], t0, sGL, stmp, flags=ld_flags)
                E["vm_g"] = P.vload("buffer_load_dword", vG[1], t0, sGL, stmp, off=128, flags=ld_flags)
            st.slots[-1]["pre"] = gl
    st.run(dma_per_slot=2)
    st.drain()
    mid_stamp(P, list(range(60, 96, 2)))
    P.wait(vm=E["vm_g"])
    vOm = [V(14), V(15)]
    for r in range(2):
        P.valu("v_cvt_pk_bf16_f32", vG[r], vG[r], vG[r])
        P.valu("v_lshlrev_b32", vG[r], 16, vG[r])
        P.valu("v_mul_f32", vG[r], hex(f2u(-LOG2E)), vG[r])
        P.valu("v_exp_f32", vG[r], vG[r])
        P.valu("v_add_f32", vG[r], 1.0, vG[r])
        P.valu("v_rcp_f32", vG[r], vG[r])
        P.valu("v_cvt_pk_bf16_f32", vG[r], vG[r], vG[r])
        P.valu("v_lshlrev_b32", vG[r], 16, vG[r])
        P.valu("v_sub_f32", vOm[r], 1.0, vG[r])
        P.valu("v_cvt_pk_bf16_f32", vOm[r], vOm[r], vOm[r])
        P.valu("v_lshlrev_b32", vOm[r], 16, vOm[r])
    for q in range(4):
        r = q >> 1
        for e in range(16):
            P.valu("v_mul_f32", ACCb[q][e], ACCb[q][e], vOm[r])
        for e in range(16):
            P.valu("v_fmac_f32", ACCb[q][e], ACCa[q][e], vG[r], extra_rd=ACCb[q][e].regs())
    P.valu("v_add_u32", t0, sLds, vL16)
    for q in range(4):
        for pc in range(4):
            P.ds_write("ds_write_b128", t0, ACCb[q].sub(4 * pc, 4), q * 4096 + pc * 1024)
            if len(P.lg) - P.lg_done >= 15: P.wait(lg=len(P.lg) - 8)
    P.salu("s_lshl_b32", stmp, sw, 12)
    P.valu("v_add_u32", t1, stmp, vL16)
    P.valu("v_add_u32", t2, 81920, t1)
    P.wait_all(vm=False); P.barrier()
    T = [V(32 + 16 * i, 16) for i in range(4)]
    idx = []
    for src in range(4):
        for pc in range(4):
            base = t1 if src < 2 else t2
            if len(P.lg) - P.lg_done >= 15: P.wait(lg=len(P.lg) - 12)
            idx.append(P.ds_read("ds_read_b128", T[src].sub(4 * pc, 4), base, (src & 1) * 40960 + pc * 1024))
    P.salu("s_lshr_b32", S(5), sw, 1)
    P.salu("s_lshl_b32", stmp, sspan, 6)
    P.salu("s_add_u32", S(5), S(5), stmp)
    P.salu("s_mul_i32", S(5), S(5), 896)
    P.salu("s_lshl_b32", stmp, scb, 7)
    P.salu("s_add_u32", S(5), S(5), stmp)
    P.salu("s_and_b32", stmp, sw, 1)
    P.salu("s_lshl_b32", stmp, stmp, 6)
    P.salu("s_add_u32", S(5), S(5), stmp)
    P.valu("v_mul_u32_u24", t0, 1792, vm_)
    P.valu("v_lshl_add_u32", t0, vhalf, 4, t0)
    P.wait(lg=idx[7])
    for e in range(16): P.valu("v_add_f32", T[0][e], T[0][e], T[1][e])
    P.wait(lg=idx[15])
    for e in range(16): P.valu("v_add_f32", T[2][e], T[2][e], T[3][e])
    for e in range(16): P.valu("v_add_f32", T[0][e], T[0][e], T[2][e])
    for e in range(8): P.valu("v_cvt_pk_bf16_f32", T[0][e], T[0][2 * e], T[0][2 * e + 1])
    for pr in range(2):
        P.valu("v_permlane32_swap_b32", T[0][4 * pr], T[0][4 * pr + 2])
        P.valu("v_permlane32_swap_b32", T[0][4 * pr + 1], T[0][4 * pr + 3])
    for pr in range(2):
        P.vstore("buffer_store_dwordx4", T[0].sub(4 * pr, 4), t0, sO, S(5), off=32 * pr)

def gen_k2(name):
    P = Prog()
    P.raw("s_cmp_ge_u32 s2, 224", "salu"); P.raw(f"s_cbranch_scc1 {name}_done")
    P.raw("s_load_dwordx16 s[16:31], s[0:1], 0")
    P.raw("s_load_dwordx2 s[32:33], s[0:1], 64")
    P.raw("s_load_dwordx2 s[36:37], s[0:1], 80")
    P.valu("v_lshrrev_b32", V(4), 6, V(0))
    P.valu("v_and_b32", V(1), 63, V(0))
    P.valu("v_and_b32", V(2), 31, V(0))
    P.valu("v_readfirstlane_b32", S(3), V(4))
    P.valu("v_bfe_u32", V(3), V(0), 5, 1)
    P.salu("s_and_b32", S(5), S(2), 7)
    P.salu("s_lshr_b32", S(8), S(2), 3)
    P.salu("s_mul_i32", S(7), S(8), 37)
    P.salu("s_lshr_b32", S(7), S(7), 8)
    P.salu("s_mul_i32", S(6), S(7), 7)
    P.salu("s_sub_u32", S(8), S(8), S(6))
    P.salu("s_lshl_b32", S(5), S(5), 2)
    P.salu("s_add_u32", S(7), S(7), S(5))
    P.raw("s_waitcnt lgkmcnt(0)")
    E = gen_k2_body(P)
    gen_k2_main(P, E)
    return stamp_begin() + P.finalize() + mid_save(P) + stamp_end(1) + mid_dump(P, 1) + f"{name}_done:\n    s_endpgm\n"
```

```python
import sys
from fw import kd
import gen1, gen2
HDR = open("gated_mix__sliding_local_dilated__glu_gated_glu__prompt.s.ref").read().split("; Override launch")[0]
def two_kernel():
    s = HDR
    s += "; @launch kernel=k1_kernel grid=(256,1,1) block=(256,1,1) lds=163840\n"
    s += "; @launch kernel=k2_kernel grid=(224,1,1) block=(256,1,1) lds=163840\n"
    s += '.amdgcn_target "amdgcn-amd-amdhsa--gfx950"\n.text\n'
    for n, g in (("k1_kernel", gen1.gen_k1), ("k2_kernel", gen2.gen_k2)):
        s += f".globl {n}\n.p2align 8\n.type {n},@function\n{n}:\n" + g(n)
    s += '.section .rodata,"a"\n' + kd("k1_kernel", 368, 256) + kd("k2_kernel", 384, 256)
    return s
if __name__ == "__main__":
    import fw
    if "--stamp" in sys.argv: fw.STAMP["on"] = True
    open(sys.argv[1] if len(sys.argv) > 1 else "v1.s", "w").write(two_kernel())
```

```python
import re

def R(kind, lo, n=1):
    return [f"{kind}{lo+i}" for i in range(n)]
def rng(kind, lo, n):
    return f"{kind}{lo}" if n == 1 else f"{kind}[{lo}:{lo+n-1}]"

class Reg:
    def __init__(s, kind, lo, n=1):
        s.kind, s.lo, s.n = kind, lo, n
    def __str__(s): return rng(s.kind, s.lo, s.n)
    def regs(s): return R(s.kind, s.lo, s.n)
    def sub(s, off, n=1):
        assert off + n <= s.n
        return Reg(s.kind, s.lo + off, n)
    def __getitem__(s, i): return s.sub(i, 1)
def V(lo, n=1): return Reg('v', lo, n)
def A(lo, n=1): return Reg('a', lo, n)
def S(lo, n=1): return Reg('s', lo, n)

TRANS = ("v_exp_f32", "v_rcp_f32", "v_log_f32", "v_rsq_f32", "v_sqrt_f32")

class Ins:
    __slots__ = ("text", "kind", "rd", "wr", "srcC", "tag", "passes", "states")
    def __init__(s, text, kind, rd=(), wr=(), srcC=(), passes=0, states=1):
        s.text, s.kind, s.rd, s.wr, s.srcC, s.passes, s.states = text, kind, set(rd), set(wr), set(srcC), passes, states

def _regs(x):
    if isinstance(x, Reg): return x.regs()
    if isinstance(x, str) and x in ("vcc", "exec", "m0"): return [x]
    return []

class Prog:
    def __init__(s):
        s.ins = []
        s.vm = []
        s.lg = []
        s.vm_done = 0
        s.lg_done = 0
    def raw(s, text, kind="other", rd=(), wr=(), **kw):
        i = Ins(text, kind, rd, wr, **kw); s.ins.append(i); return i
    def label(s, name): s.raw(name + ":", "label", states=0)
    def comment(s, t): s.raw("; " + t, "label", states=0)
    def salu(s, op, dst, *src):
        rd = [r for x in src for r in _regs(x)]
        s.raw(f"{op} {dst}, " + ", ".join(str(x) for x in src), "salu", rd, _regs(dst))
    def s_nop(s, n): s.raw(f"s_nop {n}", "nop", states=n + 1)
    def valu(s, op, dst, *src, extra_rd=(), extra_wr=()):
        rd = [r for x in src for r in _regs(x)] + list(extra_rd)
        for x in src:
            if isinstance(x, str) and x.startswith("-v"): rd.append(x[1:])
        kind = "trans" if op.split("_e")[0] in TRANS or op in TRANS else "valu"
        if op.startswith("v_dot2"): kind = "dot"
        if op.startswith("v_permlane"): kind = "permlane"; rd += _regs(dst); extra_wr = list(extra_wr) + _regs(src[0])
        if op.startswith("v_readfirstlane"): kind = "readlane"
        s.raw(f"{op} {dst}, " + ", ".join(str(x) for x in src), kind, rd, _regs(dst) + list(extra_wr))
    def mfma(s, d, a, b, c, op="v_mfma_f32_32x32x16_bf16"):
        s.raw(f"{op} {d}, {a}, {b}, {c}", "mfma", _regs(a) + _regs(b), _regs(d), srcC=_regs(c), passes=8)
    def ds_read(s, op, dst, addr, off, tag=None):
        assert 0 <= off <= 65535, off
        s.raw(f"{op} {dst}, {addr} offset:{off}", "ds", _regs(addr), _regs(dst)); s.lg.append(tag); return len(s.lg) - 1
    def ds_write(s, op, addr, src, off, tag=None):
        assert 0 <= off <= 65535, off
        s.raw(f"{op} {addr}, {src} offset:{off}", "ds", _regs(addr) + _regs(src)); s.lg.append(tag); return len(s.lg) - 1
    def dma(s, voff, srd, soff, tag=None, flags=""):
        s.raw(f"buffer_load_dwordx4 {voff}, {srd}, {soff} offen lds{flags}", "dma", _regs(voff) + _regs(srd) + _regs(soff) + ["m0"]); s.vm.append(tag); return len(s.vm) - 1
    def vload(s, op, dst, voff, srd, soff, off=0, tag=None, flags=""):
        o = f" offset:{off}" if off else ""
        s.raw(f"{op} {dst}, {voff}, {srd}, {soff} offen{o}{flags}", "vmem", _regs(voff) + _regs(srd) + _regs(soff), _regs(dst)); s.vm.append(tag); return len(s.vm) - 1
    def vstore(s, op, src, voff, srd, soff, off=0, tag=None, flags=""):
        o = f" offset:{off}" if off else ""
        i = s.raw(f"{op} {src}, {voff}, {srd}, {soff} offen{o}{flags}", "store", _regs(voff) + _regs(srd) + _regs(soff) + _regs(src))
        i.tag = set(_regs(src)); s.vm.append(tag); return len(s.vm) - 1
    def wait(s, vm=None, lg=None):
        parts = []
        if vm is not None and vm >= s.vm_done:
            n = len(s.vm) - 1 - vm
            assert n <= 63, n
            parts.append(f"vmcnt({n})"); s.vm_done = vm + 1
        if lg is not None and lg >= s.lg_done:
            n = len(s.lg) - 1 - lg
            assert n <= 15, n
            parts.append(f"lgkmcnt({n})"); s.lg_done = lg + 1
        if parts: s.raw("s_waitcnt " + " ".join(parts), "wait")
    def wait_all(s, vm=True, lg=True):
        s.wait(vm=len(s.vm) - 1 if vm and s.vm else None, lg=len(s.lg) - 1 if lg and s.lg else None)
    def barrier(s): s.raw("s_barrier", "other")
    def check_outstanding(s):
        assert len(s.vm) - s.vm_done <= 63, ("vm outstanding", len(s.vm) - s.vm_done)
        assert len(s.lg) - s.lg_done <= 15, ("lg outstanding", len(s.lg) - s.lg_done)
    def finalize(s):
        out = []
        VAL = ("valu", "trans", "dot", "permlane", "readlane")
        def need(prev, cur):
            n = 0
            pw, pr = prev.wr, prev.rd
            cr, cw = cur.rd | cur.srcC, cur.wr
            raw = pw & cr
            waw = pw & cw
            if prev.kind == "mfma":
                if cur.kind == "mfma":
                    if pw & cur.rd: n = max(n, 12)
                    if pw & cur.srcC and pw != cur.srcC: n = max(n, 10)
                    if waw and not (pw & cur.srcC): n = max(n, 12)
                elif raw or waw: n = max(n, 12)
                if cur.kind in VAL and (prev.srcC & cw): n = max(n, 7)
            if prev.kind in VAL:
                vw = {r for r in pw if r[0] in "va" and r != "vcc"}
                sw = pw - vw
                if cur.kind == "mfma" and (vw & cr): n = max(n, 2)
                if prev.kind == "trans" and cur.kind in VAL and cur.kind != "trans" and (vw & cr): n = max(n, 1)
                if prev.kind == "trans" and cur.kind == "trans" and (vw & cr): n = max(n, 1)
                if prev.kind == "dot" and (vw & (cr | cw)) and cur.kind != "dot": n = max(n, 3)
                if cur.kind == "permlane" and (vw & cr): n = max(n, 2)
                if cur.kind == "readlane" and (vw & cr): n = max(n, 1)
                if sw & cr:
                    if cur.kind in ("vmem", "store", "dma"): n = max(n, 5)
                    elif cur.kind in VAL: n = max(n, 2)
                    elif cur.kind == "salu": n = max(n, 1)
            if prev.kind == "salu" and "m0" in pw and cur.kind == "dma": n = max(n, 1)
            if prev.kind == "store" and (prev.tag & cw): n = max(n, 2)
            return n
        for cur in s.ins:
            if cur.kind not in ("label",):
                dist = 0; pad = 0
                for prev in reversed(out):
                    if dist >= 12: break
                    if prev.kind == "label": continue
                    k = need(prev, cur)
                    if k > dist: pad = max(pad, k - dist)
                    dist += prev.states
                while pad > 0:
                    k = min(pad, 16)
                    out.append(Ins(f"s_nop {k-1}", "nop", states=k)); pad -= k
            out.append(cur)
        return "\n".join(("" if i.kind == "label" and not i.text.startswith(";") else "    ") + i.text for i in out) + "\n"

def kd(name, vgpr, acc, sgpr=102):
    return f""".p2align 6
.amdhsa_kernel {name}
  .amdhsa_next_free_vgpr {vgpr}
  .amdhsa_next_free_sgpr {sgpr}
  .amdhsa_accum_offset {acc}
  .amdhsa_group_segment_fixed_size 0
  .amdhsa_kernarg_size 88
  .amdhsa_user_sgpr_count 2
  .amdhsa_user_sgpr_kernarg_segment_ptr 1
  .amdhsa_system_sgpr_workgroup_id_x 1
.end_amdhsa_kernel
"""

STAMP = {"on": False}
def stamp_begin():
    if not STAMP["on"]: return ""
    return "    s_memrealtime s[100:101]\n    s_memtime s[98:99]\n    s_mov_b32 s97, s2\n"
def stamp_end(slot, mids=()):
    if not STAMP["on"]: return ""
    t = """    s_waitcnt vmcnt(0)
    s_memrealtime s[60:61]
    s_memtime s[62:63]
    s_waitcnt lgkmcnt(0)
    s_add_u32 s64, s36, 0x1000000
    s_addc_u32 s65, s37, 0
    s_mov_b32 s66, 0x200000
    s_mov_b32 s67, 0x00020000
    s_lshl_b32 s68, s97, 3
    s_add_u32 s68, s68, s3
    s_lshl_b32 s68, s68, 5
    s_add_u32 s68, s68, %d
    v_mov_b32 v1, 0
    v_mov_b32 v4, s100
    v_mov_b32 v5, s101
    v_mov_b32 v6, s98
    v_mov_b32 v7, s99
    v_mov_b32 v8, s60
    v_mov_b32 v9, s61
    v_mov_b32 v10, s62
    v_mov_b32 v11, s63
    s_mov_b64 exec, 1
    buffer_store_dwordx4 v[4:7], v1, s[64:67], s68 offen
    buffer_store_dwordx4 v[8:11], v1, s[64:67], s68 offen offset:16
""" % (slot * 0x40000)
    return t

def mid_stamp(P, pairs):
    if not STAMP["on"]: return
    if not hasattr(P, "mids"): P.mids = []
    r = pairs[len(P.mids)]; P.mids.append(r)
    P.raw(f"s_memtime s[{r}:{r+1}]", "other")
def mid_dump(P, slot):
    if not STAMP["on"] or not hasattr(P, "mids"): return ""
    t = "    s_lshl_b32 s68, s97, 3\n    s_add_u32 s68, s68, s3\n    s_lshl_b32 s68, s68, 7\n    s_add_u32 s68, s68, %d\n" % (0x100000 + slot * 0x40000)
    for i, r in enumerate(P.mids):
        t += f"    v_mov_b32 v4, v{200+i}\n    buffer_store_dword v4, v1, s[64:67], s68 offen offset:{4*i}\n    s_nop 1\n"
    return t
def mid_save(P):
    if not STAMP["on"] or not hasattr(P, "mids"): return ""
    t = "    s_waitcnt vmcnt(0) lgkmcnt(0)\n"
    for i, r in enumerate(P.mids): t += f"    v_mov_b32 v{200+i}, s{r}\n"
    return t
```

```python
from fw import *
import struct
def f2u(x): return struct.unpack("<I", struct.pack("<f", x))[0]
LOG2E = 1.4426950408889634
X_BYTES = 2048 * 896
AF_TILE = 144 * 1024
AF_BYTES = 64 * AF_TILE
GL_OFF = AF_BYTES
sX, sW1, sW2, sWS, sGL = S(40, 4), S(44, 4), S(48, 4), S(52, 4), S(56, 4)
ST = {"flags": ""}

def srd(P, d, lo, hi, nbytes):
    P.salu("s_mov_b32", d[0], lo); P.salu("s_mov_b32", d[1], hi)
    P.salu("s_mov_b32", d[2], nbytes); P.salu("s_mov_b32", d[3], "0x00020000")

def x_dma_voff(P, dst, vl, sw, t0, t1, t2):
    P.valu("v_lshrrev_b32", t0, 3, vl)
    P.salu("s_lshl_b32", S(5), sw, 3)
    P.valu("v_add_u32", t0, S(5), t0)
    P.valu("v_lshrrev_b32", t1, 1, t0)
    P.valu("v_and_b32", t1, 7, t1)
    P.valu("v_and_b32", t2, 7, vl)
    P.valu("v_xor_b32", t1, t1, t2)
    P.valu("v_lshlrev_b32", t1, 4, t1)
    P.valu("v_mul_u32_u24", t0, 1792, t0)
    P.valu("v_add_u32", dst, t0, t1)

def x_read_addrs(P, dsts, vm, vhalf, t0, t1, rowsub=0):
    P.valu("v_lshrrev_b32", t0, 1, vm)
    P.valu("v_and_b32", t0, 7, t0)
    P.valu("v_xor_b32", t0, t0, vhalf)
    P.valu("v_lshlrev_b32", t1, 7, vm)
    if rowsub: P.valu("v_subrev_u32", t1, rowsub * 128, t1)
    for ks in range(4):
        P.valu("v_xor_b32", dsts[ks], 2 * ks, t0)
        P.valu("v_lshlrev_b32", dsts[ks], 4, dsts[ks])
        P.valu("v_add_u32", dsts[ks], dsts[ks], t1)

class Stream:
    def __init__(s, P, LA, valu_budget=20):
        s.P, s.LA, s.slots = P, LA, []
        s.dq = []
        s.vq = []
        s.budget = valu_budget
    def add(s, mfma, reads=(), pre=None, post=None):
        s.slots.append(dict(mfma=mfma, reads=list(reads), pre=pre, post=post))
    def run(s, dma_per_slot=1):
        P, n = s.P, len(s.slots)
        last_rd = [None] * n
        for i in range(n + s.LA):
            j = i - s.LA
            if j >= 0:
                sl = s.slots[j]
                if last_rd[j] is not None: P.wait(lg=last_rd[j])
                sl["mfma"]()
                if sl["post"]: sl["post"](j)
            used = 0
            if i < n:
                sl = s.slots[i]
                if sl["pre"]: sl["pre"]()
                for r in sl["reads"]:
                    last_rd[i] = r(); used += 4
                P.check_outstanding()
            k = dma_per_slot if j >= 0 else 99
            while s.dq and k > 0:
                s.dq.pop(0)(); k -= 1; used += 8
                P.check_outstanding()
            while s.vq and s.vq[0][2] <= j and used + s.vq[0][0] <= s.budget + (4 if used == 0 else 0):
                c, fn, _ = s.vq.pop(0); fn(); used += c
    def drain(s):
        while s.dq: s.dq.pop(0)()
        while s.vq: s.vq.pop(0)[1]()

def gen_glu():
    P = Prog()
    sw, sw1k, stmp, su, sj = S(3), S(4), S(6), S(7), S(8)
    swb, sst = S(9), S(10)
    TB = [S(60 + i) for i in range(11)]
    vl, vm_, vhalf = V(1), V(2), V(3)
    t0, t1, t2 = V(4), V(5), V(6)
    vXd, vGd, vUd, vL16 = V(8), V(9), V(10), V(11)
    vXr = [[V(12 + 4 * b + k) for k in range(4)] for b in range(3)]
    vWr = [V(24 + b) for b in range(3)]
    ACC = [V(32 + 16 * i, 16) for i in range(6)]
    XB = [V(128 + 4 * i, 4) for i in range(8)]
    WF = [A(4 * i, 4) for i in range(28)]
    P.s_nop(1)
    P.salu("s_mul_i32", S(5), S(7), 171)
    P.salu("s_lshr_b32", S(5), S(5), 10)
    P.salu("s_mul_i32", stmp, S(5), 6)
    P.salu("s_sub_u32", sj, S(7), stmp)
    P.salu("s_mov_b32", su, S(5))
    srd(P, sW1, S(24), S(25), 448 * 3584)
    srd(P, sW2, S(26), S(27), 448 * 3584)
    x_dma_voff(P, vXd, vl, sw, t0, t1, t2)
    P.valu("v_lshrrev_b32", t0, 3, vl)
    P.valu("v_bfe_u32", t1, vl, 4, 1)
    P.valu("v_bfe_u32", t2, vl, 1, 2)
    P.valu("v_xor_b32", t1, t1, t2)
    P.valu("v_mul_u32_u24", t0, 3584, t0)
    P.valu("v_and_b32", t2, 1, vl)
    P.valu("v_lshl_add_u32", t0, t2, 4, t0)
    P.valu("v_lshl_add_u32", vGd, t1, 5, t0)
    P.valu("v_xor_b32", t1, 2, t1)
    P.valu("v_lshl_add_u32", vUd, t1, 5, t0)
    P.salu("s_mul_i32", swb, sw, 8 * 3584)
    P.salu("s_lshl_b32", stmp, su, 7)
    P.salu("s_add_u32", swb, swb, stmp)
    P.salu("s_mul_i32", S(11), sj, 11)
    for i in range(11):
        P.salu("s_add_u32", S(12), S(11), i)
        P.salu("s_lshr_b32", S(13), S(12), 1)
        P.salu("s_lshl_b32", S(13), S(13), 6)
        P.salu("s_and_b32", S(12), S(12), 1)
        P.salu("s_add_u32", S(12), S(12), S(13))
        P.salu("s_mul_i32", TB[i], S(12), 896)
    P.salu("s_mul_i32", sst, S(11), AF_TILE)
    P.salu("s_lshl_b32", S(12), su, 2)
    P.salu("s_add_u32", S(12), S(12), sw)
    P.salu("s_add_u32", S(12), S(12), 32)
    P.salu("s_lshl_b32", S(12), S(12), 10)
    P.salu("s_add_u32", sst, sst, S(12))

    pos = 0; items = []
    for c in range(7):
        items.append([(pos + b) % 40 for b in range(8)]); pos += 8
    for t in range(4, 11):
        items.append([(pos + b) % 40 for b in range(7)]); pos += 7
    owner = {}; need_free = []
    for n, blks in enumerate(items):
        need_free.append(max([owner.get(b, -1) for b in blks]))
        for b in blks: owner[b] = n
    last_vm = {}
    def dma_ops(n):
        ops = []
        def one(blk, srd_, voff, sbase, const):
            def f():
                P.salu("s_add_u32", "m0", sw1k, blk * 4096)
                P.salu("s_add_u32", stmp, sbase, const)
                last_vm[n] = P.dma(voff, srd_, stmp)
            return f
        b = items[n]
        if n < 7:
            for h in range(2):
                ops.append(one(b[2 * h], sW1, vGd, swb, (n * 64 + 32 * h) * 3584))
                ops.append(one(b[2 * h + 1], sW2, vUd, swb, (n * 64 + 32 * h) * 3584))
                for t in (2 * h, 2 * h + 1):
                    ops.append(one(b[4 + t], sX, vXd, TB[t], n * 128))
        else:
            for kc in range(7):
                ops.append(one(b[kc], sX, vXd, TB[n - 3], kc * 128))
        return ops
    issued = set()
    for n in range(len(items)):
        if need_free[n] < 0:
            for f in dma_ops(n): f()
            issued.add(n)
    P.valu("v_lshlrev_b32", vL16, 4, vl)
    x_read_addrs(P, vXr[0], vm_, vhalf, t0, t1)
    for b in (1, 2):
        for k in range(4): P.valu("v_add_u32", vXr[b][k], 65536 * b, vXr[0][k])
    P.valu("v_bfe_u32", t0, vl, 4, 1)
    P.valu("v_bfe_u32", t1, vl, 3, 1)
    P.valu("v_lshl_add_u32", t1, t0, 1, t1)
    P.valu("v_xor_b32", t1, sw, t1)
    P.valu("v_lshlrev_b32", t1, 5, t1)
    P.valu("v_lshl_add_u32", t1, t0, 12, t1)
    P.valu("v_bfe_u32", t0, vl, 2, 2)
    P.valu("v_lshl_add_u32", t0, vhalf, 3, t0)
    P.valu("v_lshl_add_u32", t1, t0, 7, t1)
    P.valu("v_and_b32", t0, 3, vl)
    P.valu("v_lshl_add_u32", vWr[0], t0, 3, t1)
    for b in (1, 2): P.valu("v_add_u32", vWr[b], 65536 * b, vWr[0])

    LA = 6
    st = Stream(P, LA)
    def pre_item(n):
        def f():
            P.wait(vm=last_vm[n]); P.barrier()
            mid_stamp(P, list(range(72, 96, 2)) + list(range(16, 32, 2)))
            for m in range(len(items)):
                if m not in issued and need_free[m] <= n - 2 and all(k in issued for k in range(m)):
                    st.dq.extend(dma_ops(m)); issued.add(m)
        return f
    def rd_x(buf, blk, ks):
        a = blk * 4096
        return lambda: P.ds_read("ds_read_b128", buf, vXr[a >> 16][ks], a & 0xFFFF)
    def rd_w(n, blk, ks, rd):
        a = blk * 4096 + (ks & 1) * 2048 + rd * 512
        base = 0 if a + 8192 <= 65536 else (a >> 16)
        base = a >> 16
        return lambda: P.ds_read("ds_read_b64_tr_b16", WF[n].sub(2 * rd, 2), vWr[base], a & 0xFFFF)
    def epilogue(tile, slot_idx):
        acc = ACC[tile % 6] if tile < 6 else ACC[tile - 6]
        ops = []
        for e in range(8): ops.append((4, lambda e=e: P.valu("v_mul_f32", acc[e], hex(f2u(-LOG2E)), acc[e])))
        for e in range(8): ops.append((8, lambda e=e: P.valu("v_exp_f32", acc[e], acc[e])))
        for e in range(8): ops.append((4, lambda e=e: P.valu("v_add_f32", acc[e], 1.0, acc[e])))
        for e in range(8): ops.append((8, lambda e=e: P.valu("v_rcp_f32", acc[e], acc[e])))
        for e in range(8): ops.append((4, lambda e=e: P.valu("v_mul_f32", acc[e], acc[e], acc[8 + e])))
        for e in range(4): ops.append((4, lambda e=e: P.valu("v_cvt_pk_bf16_f32", acc[e], acc[2 * e], acc[2 * e + 1])))
        def store():
            P.salu("s_add_u32", stmp, sst, tile * AF_TILE)
            P.vstore("buffer_store_dwordx4", acc.sub(0, 4), vL16, sWS, stmp, flags=ST["flags"])
        ops.append((8, store))
        for c, f in ops: st.vq.append((c, f, slot_idx + 2))
    xb = 0
    for c in range(7):
        b = items[c]
        for ks in range(4):
            n = 4 * c + ks
            for t in range(4):
                buf = XB[xb % 8]; xb += 1
                reads = []
                if t == 0: reads += [rd_w(n, b[2 * (ks >> 1)], ks, 0), rd_w(n, b[2 * (ks >> 1)], ks, 1)]
                reads.append(rd_x(buf, b[4 + t], ks))
                mf = (lambda t=t, n=n, buf=buf: P.mfma(ACC[t], WF[n], buf, 0 if n == 0 else ACC[t]))
                post = None
                if n == 27 and t == 3:
                    post = lambda j: [epilogue(tt, j) for tt in range(4)]
                st.add(mf, reads, pre=pre_item(c) if (ks == 0 and t == 0) else None, post=post)
    for tile in range(4, 11):
        b = items[tile + 3]
        acc = ACC[tile % 6]
        for n in range(28):
            buf = XB[xb % 8]; xb += 1
            mf = (lambda n=n, buf=buf, acc=acc: P.mfma(acc, WF[n], buf, 0 if n == 0 else acc))
            post = (lambda j, tile=tile: epilogue(tile, j)) if n == 27 else None
            st.add(mf, [rd_x(buf, b[n >> 2], n & 3)], pre=pre_item(tile + 3) if n == 0 else None, post=post)
    st.run()
    mid_stamp(P, list(range(72, 96, 2)) + list(range(16, 32, 2)))
    st.drain()
    return P

SCALE_L2E = (28 ** -0.5) * LOG2E
def lane_mask(fn):
    m = 0
    for l in range(64):
        if fn(l & 31, l >> 5): m |= 1 << l
    return m

def gen_att(par):
    P = Prog()
    sw, sw1k, stmp, sp, srb, shd = S(3), S(4), S(6), S(7), S(8), S(9)
    swb, sst = S(10), S(11)
    TB = [S(12), S(13), S(14), S(15), S(38), S(39)]
    MC = [S(60 + 2 * i, 2) for i in range(16)]
    MP = [S(26 + 2 * i, 2) for i in range(4)]
    MP0 = [S(16 + 2 * i, 2) for i in range(4)]
    MH0 = S(24, 2)
    SLOT = 51200
    MISC = 3 * SLOT
    XK, XV = MISC + 1024, MISC + 1024 + 4096
    vl, vm_, vhalf = V(1), V(2), V(3)
    t0, t1, t2 = V(4), V(5), V(6)
    vXd, vWd, vHd, vL16 = V(8), V(9), V(10), V(11)
    vXr = [[V(12 + 4 * b + k) for k in range(4)] for b in range(3)]
    vHr = [[V(24 + 4 * b + k) for k in range(4)] for b in range(3)]
    vGr = [[V(36 + 4 * b + k) for k in range(4)] for b in range(3)]
    vWr = [V(48 + b) for b in range(3)]
    vGF = V(51)
    GD = [V(52 + i) for i in range(4)]
    XG = [V(56, 4), V(60, 4)]; GF = [V(64, 4), V(68, 4)]
    ACC = [V(96 + 16 * i, 16) for i in range(10)]
    WFb = [[A(12 * p + 4 * s_, 4) for s_ in range(3)] for p in range(2)]
    XFb = [[A(24 + 16 * p + 4 * j, 4) for j in range(4)] for p in range(2)]
    P.s_nop(1)
    P.salu("s_lshr_b32", shd, sw, 1)
    srd(P, sW1, S(18), S(19), 448 * 2688)
    srd(P, sW2, S(30), S(31), 896)
    x_dma_voff(P, vXd, vl, sw, t0, t1, t2)
    P.valu("v_lshrrev_b32", t0, 3, vl)
    P.valu("v_bfe_u32", t1, vl, 4, 1)
    P.valu("v_lshlrev_b32", t1, 2, t1)
    P.valu("v_and_b32", t2, 7, vl)
    P.valu("v_xor_b32", t1, t1, t2)
    P.valu("v_mul_u32_u24", t0, 2688, t0)
    P.valu("v_lshl_add_u32", vWd, t1, 4, t0)
    P.salu("s_mul_i32", swb, sw, 8 * 2688)
    P.salu("s_mul_i32", stmp, sp, 112)
    P.salu("s_add_u32", swb, swb, stmp)
    P.salu("s_mul_i32", S(5), srb, 192 * 896)
    for j in range(3):
        for pp in range(2):
            P.salu("s_add_u32", TB[2 * j + pp], S(5), (64 * j + pp) * 896)
    P.valu("v_bfe_u32", t0, vl, 3, 2)
    P.salu("s_lshl_b32", stmp, sw, 2)
    P.salu("s_add_u32", stmp, stmp, 16)
    P.valu("v_add_u32", t0, stmp, t0)
    P.valu("v_and_b32", t1, 7, t0)
    P.valu("v_lshlrev_b32", t1, 1, t1)
    P.valu("v_bfe_u32", t2, t0, 3, 1)
    P.valu("v_sub_u32", t1, t1, t2)
    P.salu("s_mul_i32", stmp, srb, 192)
    P.salu("s_sub_u32", stmp, stmp, 15)
    P.valu("v_add_u32", t1, stmp, t1)
    P.valu("v_max_i32", t1, 0, t1)
    P.valu("v_mul_u32_u24", t1, 896, t1)
    P.valu("v_lshrrev_b32", t0, 1, t0)
    P.valu("v_and_b32", t0, 7, t0)
    P.valu("v_and_b32", t2, 7, vl)
    P.valu("v_xor_b32", t0, t0, t2)
    P.valu("v_lshl_add_u32", vHd, t0, 4, t1)
    P.valu("v_lshlrev_b32", vL16, 4, vl)
    P.salu("s_lshr_b32", S(5), sw1k, 1)
    last_vm = {}
    def dma_ops(c):
        base = (c % 3) * SLOT
        ops = []
        def one(lds, srd_, voff, sbase, const, halo=False):
            def f():
                P.salu("s_add_u32", "m0", S(5) if halo else sw1k, lds)
                if sbase is None: P.salu("s_mov_b32", stmp, const)
                else: P.salu("s_add_u32", stmp, sbase, const)
                if halo: P.raw("s_mov_b32 exec_hi, 0", "salu", wr=["exec"])
                last_vm[c] = P.dma(voff, srd_, stmp)
                if halo: P.raw("s_mov_b32 exec_hi, -1", "salu", wr=["exec"])
            return f
        for i in range(2):
            for sec in range(3):
                ops.append(one(base + sec * 8192 + i * 4096, sW1, vWd, swb, sec * 896 + (c * 64 + 32 * i) * 2688))
            for t in range(3 * i, 3 * i + 3):
                ops.append(one(base + 24576 + t * 4096, sX, vXd, TB[t], c * 128))
        ops.append(one(base + 49152, sX, vHd, None, c * 128, halo=True))
        return ops
    P.salu("s_mov_b32", "m0", MISC)
    P.salu("s_mov_b32", stmp, 0)
    P.dma(vL16, sW2, stmp)
    for c in range(3):
        for f in dma_ops(c): f()
    x_read_addrs(P, vXr[0], vm_, vhalf, t0, t1)
    for k in range(4): P.valu("v_add_u32", vXr[0][k], 24576 + par * 4096, vXr[0][k])
    P.salu("s_mul_i32", stmp, sp, 43)
    P.salu("s_lshr_b32", stmp, stmp, 7)
    P.salu("s_mul_i32", stmp, stmp, 3)
    P.salu("s_sub_u32", stmp, sp, stmp)
    P.salu("s_lshl_b32", S(2), stmp, 13)
    for k in range(4): P.valu("v_add_u32", vGr[0][k], S(2), vXr[0][k])
    P.valu("v_or_b32", t2, 16, vm_)
    x_read_addrs(P, vHr[0], t2, vhalf, t0, t1, rowsub=16)
    for k in range(4): P.valu("v_add_u32", vHr[0][k], 49152, vHr[0][k])
    P.salu("s_mul_i32", stmp, shd, 56)
    P.valu("v_bfe_u32", t0, vl, 4, 1)
    P.valu("v_lshlrev_b32", t0, 5, t0)
    P.valu("v_and_b32", t1, 3, vl)
    P.valu("v_lshl_add_u32", t0, t1, 3, t0)
    P.valu("v_add_u32", t0, stmp, t0)
    P.valu("v_bfe_u32", t1, vl, 3, 1)
    P.valu("v_lshlrev_b32", t1, 6, t1)
    P.valu("v_xor_b32", t0, t0, t1)
    P.valu("v_bfe_u32", t1, vl, 2, 2)
    P.valu("v_lshl_add_u32", t1, vhalf, 3, t1)
    P.valu("v_lshl_add_u32", vWr[0], t1, 7, t0)
    for b in (1, 2):
        for k in range(4):
            P.valu("v_add_u32", vXr[b][k], SLOT * b, vXr[0][k])
            P.valu("v_add_u32", vHr[b][k], SLOT * b, vHr[0][k])
            P.valu("v_add_u32", vGr[b][k], SLOT * b, vGr[0][k])
        P.valu("v_add_u32", vWr[b], SLOT * b, vWr[0])
    P.valu("v_lshlrev_b32", vGF, 4, vhalf)
    P.valu("v_add_u32", vGF, MISC, vGF)
    for i in range(4): P.valu("v_mov_b32", GD[i], 0)
    P.salu("s_add_u32", sGL[0], S(36), GL_OFF)
    P.salu("s_addc_u32", sGL[1], S(37), 0)
    P.salu("s_mov_b32", sGL[3], "0x00020000")
    P.salu("s_lshl_b32", stmp, shd, 3)
    P.salu("s_add_u32", stmp, stmp, sp)
    P.raw(f"s_cmp_lt_u32 {stmp}, 3", "salu", rd=[str(stmp)])
    P.salu("s_cselect_b32", sGL[2], 8192, 0)
    P.salu("s_lshr_b32", S(2), S(2), 13)
    P.salu("s_mul_i32", stmp, srb, 3)
    P.salu("s_add_u32", S(2), S(2), stmp)
    P.salu("s_lshl_b32", S(2), S(2), 8)
    P.salu("s_add_u32", S(2), S(2), par * 128)
    P.salu("s_mul_i32", sst, srb, 6 * AF_TILE)
    P.salu("s_lshl_b32", stmp, sp, 1)
    P.salu("s_add_u32", stmp, stmp, shd)
    P.salu("s_lshl_b32", stmp, stmp, 11)
    P.salu("s_add_u32", sst, sst, stmp)
    P.salu("s_add_u32", sst, sst, par * AF_TILE)
    def setmask(d, m):
        P.salu("s_mov_b32", d[0], hex(m & 0xFFFFFFFF)); P.salu("s_mov_b32", d[1], hex(m >> 32))
    def allmasks():
        for v in range(16):
            i, r = v >> 2, v & 3
            setmask(MC[v], lane_mask(lambda m, h: 0 <= m - (8 * i + 4 * h + r) <= 7))
        for r in range(4):
            setmask(MP[r], lane_mask(lambda m, h: 4 * h + r > m))
        P.raw(f"s_cmp_eq_u32 {srb}, 0", "salu", rd=[str(srb)])
        for r in range(4):
            P.salu("s_cselect_b64", MP0[r], 0, MP[r])
        setmask(MH0, 0xFFFFFFFF)
    if not STAMP["on"]: allmasks()
    APAIRS = list(range(60, 92, 2))

    LA = 6
    st = Stream(P, LA)
    def pre_chunk(c):
        def f():
            P.wait(vm=last_vm[c]); P.barrier()
            mid_stamp(P, APAIRS)
        return f
    def post_chunk(c):
        def f(j):
            if c + 3 < 7:
                P.barrier()
                st.dq.extend(dma_ops(c + 3))
        return f
    for c in range(7):
        sl = c % 3
        for ks in range(4):
            n = 4 * c + ks; pb = n & 1
            W, X = WFb[pb], XFb[pb]
            def rw(sec, rd): return lambda sec=sec, rd=rd, W=W, sl=sl, ks=ks: P.ds_read("ds_read_b64_tr_b16", W[sec].sub(2 * rd, 2), vWr[sl], sec * 8192 + ks * 2048 + rd * 512)
            def rx(j): return lambda j=j, X=X, sl=sl, ks=ks: P.ds_read("ds_read_b128", X[j], vXr[sl][ks], j * 8192)
            rh = lambda X=X, sl=sl, ks=ks: P.ds_read("ds_read_b128", X[3], vHr[sl][ks], 0)
            rg = lambda pb=pb, sl=sl, ks=ks: P.ds_read("ds_read_b128", XG[pb], vGr[sl][ks], 0)
            rf = lambda pb=pb, n=n: P.ds_read("ds_read_b128", GF[pb], vGF, n * 32)
            def dots(j, pb=pb):
                for q in range(4): st.vq.append((8, lambda q=q: P.valu("v_dot2_f32_bf16", GD[q], XG[pb][q], GF[pb][q], GD[q]), j))
            for j in range(3):
                for sec in range(3):
                    acc = ACC[3 * j + sec]
                    reads = []
                    if j == 0: reads += [rw(sec, 0), rw(sec, 1)]
                    if sec == 0: reads.append(rx(j))
                    if j == 1 and sec == 1: reads += [rg, rf]
                    if sec < 2: mf = lambda acc=acc, W=W, X=X, j=j, sec=sec, n=n: P.mfma(acc, W[sec], X[j], 0 if n == 0 else acc)
                    else: mf = lambda acc=acc, W=W, X=X, j=j, n=n: P.mfma(acc, X[j], W[2], 0 if n == 0 else acc)
                    st.add(mf, reads, pre=pre_chunk(c) if (ks == 0 and j == 0 and sec == 0) else None,
                           post=dots if (j == 1 and sec == 1) else None)
            acc = ACC[9]
            if par == 0: mf = lambda acc=acc, W=W, X=X, n=n: P.mfma(acc, W[1], X[3], 0 if n == 0 else acc)
            else: mf = lambda acc=acc, W=W, X=X, n=n: P.mfma(acc, X[3], W[2], 0 if n == 0 else acc)
            st.add(mf, [rh], post=post_chunk(c) if ks == 3 else None)
    st.run()
    st.drain()
    if STAMP["on"]:
        mid_stamp(P, APAIRS)
        P.raw("s_waitcnt lgkmcnt(0)")
        for i, r in enumerate(P.mids): P.raw(f"v_accvgpr_write_b32 a{100+i}, s{r}")
        allmasks()
    def pack(acc, zero_pad=False):
        for e in range(8): P.valu("v_cvt_pk_bf16_f32", acc[e], acc[2 * e], acc[2 * e + 1])
        if zero_pad:
            for e in (6, 7): P.valu("v_cndmask_b32", acc[e], 0, acc[e], MH0)
    P.valu("v_add_f32", GD[0], GD[0], GD[1]); P.valu("v_add_f32", GD[2], GD[2], GD[3])
    P.valu("v_add_f32", GD[0], GD[0], GD[2]); P.valu("v_mov_b32", GD[1], GD[0])
    H = ACC[9]
    pack(H, zero_pad=(par == 0))
    P.valu("v_permlane32_swap_b32", GD[0], GD[1])
    P.valu("v_add_f32", GD[0], GD[0], GD[1])
    P.valu("v_lshlrev_b32", t0, 2, vm_)
    P.vstore("buffer_store_dword", GD[0], t0, sGL, S(2), flags=ST["flags"])
    P.salu("s_lshl_b32", stmp, shd, 11)
    P.salu("s_add_u32", stmp, stmp, XK)
    P.valu("v_add_u32", t1, stmp, vL16)
    P.salu("s_lshl_b32", stmp, shd, 9)
    P.salu("s_add_u32", stmp, stmp, XV)
    P.valu("v_lshlrev_b32", t2, 3, vl)
    P.valu("v_add_u32", t2, stmp, t2)
    if par == 0:
        P.ds_write("ds_write_b128", t1, H.sub(0, 4), 0)
        P.ds_write("ds_write_b128", t1, H.sub(4, 4), 1024)
    else:
        P.ds_write("ds_write_b64", t2, H.sub(6, 2), 0)
    for j in range(3):
        pack(ACC[3 * j]); pack(ACC[3 * j + 1], zero_pad=True)
    P.wait_all(vm=False); P.barrier()
    if par == 0:
        KH = H.sub(0, 8); VH = H.sub(8, 2)
        rdx = P.ds_read("ds_read_b64", VH, t2, 0); ip0 = 3
    else:
        KH = H.sub(8, 8); VH = H.sub(4, 2)
        P.ds_read("ds_read_b128", KH.sub(0, 4), t1, 0)
        rdx = P.ds_read("ds_read_b128", KH.sub(4, 4), t1, 1024); ip0 = 2
    SC = [V(8, 16), V(40, 16)]; SP = [V(24, 16), V(56, 16)]; O = V(72, 16)
    vNEG, vMX, vT, vC = V(88), V(89), V(90), V(91)
    vL16b = V(92)
    P.valu("v_mov_b32", vL16b, vL16)
    P.valu("v_mov_b32", vNEG, "0xff800000")
    P.valu("v_mov_b32", vC, hex(f2u(SCALE_L2E)))
    Q = [ACC[3 * j].sub(0, 8) for j in range(3)]; K = [ACC[3 * j + 1].sub(0, 8) for j in range(3)]; Vv = [ACC[3 * j + 2].sub(0, 8) for j in range(3)]
    def s_mfma(j):
        b = j & 1
        kp = KH if j == 0 else K[j - 1]
        P.mfma(SC[b], K[j].sub(0, 4), Q[j].sub(0, 4), 0)
        P.mfma(SP[b], kp.sub(0, 4), Q[j].sub(0, 4), 0)
        P.mfma(SC[b], K[j].sub(4, 4), Q[j].sub(4, 4), SC[b])
        P.mfma(SP[b], kp.sub(4, 4), Q[j].sub(4, 4), SP[b])
    def softmax(j):
        b = j & 1
        ip = ip0 if j == 0 else 3
        vals = [SC[b][v] for v in range(16)] + [SP[b][4 * ip + r] for r in range(4)]
        masks = MC + (MP0 if j == 0 else MP)
        for v, m in zip(vals, masks): P.valu("v_cndmask_b32", v, vNEG, v, m)
        P.valu("v_max3_f32", vMX, vals[0], vals[1], vals[2])
        P.valu("v_max3_f32", vT, vals[3], vals[4], vals[5])
        k = 6
        while k < 20:
            tgt = vMX if ((k - 6) // 2) % 2 == 0 else vT
            P.valu("v_max3_f32", tgt, tgt, vals[k], vals[k + 1]); k += 2
        P.valu("v_max_f32", vMX, vMX, vT)
        P.valu("v_mov_b32", vT, vMX)
        P.valu("v_permlane32_swap_b32", vMX, vT)
        P.valu("v_max_f32", vMX, vMX, vT)
        P.valu("v_mul_f32", vMX, vMX, vC)
        for v in vals: P.valu("v_fma_f32", v, v, vC, "-" + str(vMX))
        for v in vals: P.valu("v_exp_f32", v, v)
        P.valu("v_add_f32", vMX, vals[0], vals[1]); P.valu("v_add_f32", vT, vals[2], vals[3])
        for k in range(4, 20):
            tgt = vMX if k % 2 == 0 else vT
            P.valu("v_add_f32", tgt, tgt, vals[k])
        P.valu("v_add_f32", vMX, vMX, vT)
        P.valu("v_mov_b32", vT, vMX)
        P.valu("v_permlane32_swap_b32", vMX, vT)
        P.valu("v_add_f32", vMX, vMX, vT)
        P.valu("v_rcp_f32", vMX, vMX)
        for v in vals: P.valu("v_mul_f32", v, v, vMX)
        for e in range(8): P.valu("v_cvt_pk_bf16_f32", SC[b][e], SC[b][2 * e], SC[b][2 * e + 1])
        for e in range(2): P.valu("v_cvt_pk_bf16_f32", SP[b][e] if ip else None, SP[b][4 * ip + 2 * e], SP[b][4 * ip + 2 * e + 1])
    def pv(j, Oacc):
        b = j & 1
        vp = VH if j == 0 else Vv[j - 1].sub(6, 2)
        P.mfma(Oacc, Vv[j].sub(0, 4), SC[b].sub(0, 4), 0)
        P.mfma(Oacc, Vv[j].sub(4, 4), SC[b].sub(4, 4), Oacc)
        P.mfma(Oacc, vp, SP[b].sub(0, 2), Oacc, op="v_mfma_f32_32x32x8_bf16")
    def o_store(j, Oacc):
        pack(Oacc, zero_pad=True)
        P.salu("s_add_u32", stmp, sst, 2 * j * AF_TILE)
        P.vstore("buffer_store_dwordx4", Oacc.sub(0, 4), vL16b, sWS, stmp, flags=ST["flags"])
        P.vstore("buffer_store_dwordx4", Oacc.sub(4, 4), vL16b, sWS, stmp, off=1024, flags=ST["flags"])
    s_mfma(1)
    P.wait(lg=rdx)
    s_mfma(0)
    for j in range(3): pack(ACC[3 * j + 2])
    softmax(1)
    pv(1, O)
    softmax(0)
    O0 = ACC[3]
    pv(0, O0)
    o_store(1, O)
    s_mfma(2)
    o_store(0, O0)
    softmax(2)
    pv(2, O)
    o_store(2, O)
    return P

def gen_k1(name):
    P = Prog()
    P.raw("s_cmp_ge_u32 s2, 256", "salu"); P.raw(f"s_cbranch_scc1 {name}_done")
    P.raw("s_load_dwordx16 s[16:31], s[0:1], 0")
    P.raw("s_load_dwordx2 s[36:37], s[0:1], 80")
    P.valu("v_lshrrev_b32", V(4), 6, V(0))
    P.valu("v_and_b32", V(1), 63, V(0))
    P.valu("v_and_b32", V(2), 31, V(0))
    P.valu("v_readfirstlane_b32", S(3), V(4))
    P.valu("v_bfe_u32", V(3), V(0), 5, 1)
    P.salu("s_and_b32", S(7), S(2), 7)
    P.salu("s_lshr_b32", S(8), S(2), 3)
    P.salu("s_lshl_b32", S(4), S(3), 10)
    P.raw("s_waitcnt lgkmcnt(0)")
    srd(P, sX, S(16), S(17), X_BYTES)
    srd(P, sWS, S(36), S(37), AF_BYTES)
    P.raw("s_cmp_lt_u32 s8, 11", "salu"); P.raw(f"s_cbranch_scc1 {name}_att")
    P.salu("s_mul_i32", S(7), S(7), 21)
    P.salu("s_add_u32", S(7), S(7), S(8))
    P.salu("s_sub_u32", S(7), S(7), 11)
    txt = stamp_begin() + P.finalize()
    G = gen_glu()
    txt += G.finalize() + mid_save(G) + stamp_end(0) + mid_dump(G, 0) + "    s_endpgm\n"
    def att_save(Pa):
        if not STAMP["on"]: return ""
        return "    s_waitcnt vmcnt(0)\n" + "".join(f"    v_accvgpr_read_b32 v{200+i}, a{100+i}\n" for i in range(len(Pa.mids)))
    txt += f"{name}_att:\n    s_and_b32 s5, s3, 1\n    s_cmp_eq_u32 s5, 1\n    s_cbranch_scc1 {name}_att1\n"
    A0 = gen_att(0)
    txt += A0.finalize() + att_save(A0) + stamp_end(0) + mid_dump(A0, 0) + "    s_endpgm\n"
    A1 = gen_att(1)
    txt += f"{name}_att1:\n" + A1.finalize() + att_save(A1) + stamp_end(0) + mid_dump(A1, 0)
    txt += f"{name}_done:\n    s_endpgm\n"
    return txt
```

```python
import sys, fw, gen1, gen2, build2
s = build2.two_kernel()
def pro(): return "    s_memrealtime s[100:101]\n    s_load_dwordx2 s[94:95], s[0:1], 72\n"
def epi(k):
    return f"""    s_waitcnt vmcnt(0)
    s_memrealtime s[60:61]
    s_waitcnt lgkmcnt(0)
    s_sub_u32 s64, s94, {512*k}
    s_subb_u32 s65, s95, 0
    s_mov_b32 s66, 256
    s_mov_b32 s67, 0x00020000
    s_not_b32 s62, s100
    s_not_b32 s63, s60
    v_mov_b32 v1, 0
    v_mov_b32 v4, s62
    v_mov_b32 v5, s100
    v_mov_b32 v6, s60
    v_mov_b32 v7, s63
    s_mov_b64 exec, 1
    buffer_atomic_umax v4, v1, s[64:67], 0 offen offset:{16*k}
    buffer_atomic_umax v5, v1, s[64:67], 0 offen offset:{16*k+4}
    buffer_atomic_umax v6, v1, s[64:67], 0 offen offset:{16*k+8}
    buffer_atomic_umax v7, v1, s[64:67], 0 offen offset:{16*k+12}
"""
parts = s.split("k2_kernel:\n")
a, b = parts[0], parts[1]
a = a.replace("k1_kernel:\n", "k1_kernel:\n" + pro())
a = a.replace("    s_endpgm\nk1_kernel_att:", epi(0) + "    s_endpgm\nk1_kernel_att:")
a = a.replace("    s_endpgm\nk1_kernel_att1:", epi(0) + "    s_endpgm\nk1_kernel_att1:")
a = a.replace("k1_kernel_done:", epi(0) + "k1_kernel_done:")
b = pro() + b.replace("k2_kernel_done:", epi(1) + "k2_kernel_done:")
open("diag1.s", "w").write(a + "k2_kernel:\n" + b)
```

```python
import sys, fw, gen1, gen2, build2
s = build2.two_kernel()
def pro(): return "    s_memrealtime s[100:101]\n    s_load_dwordx2 s[94:95], s[0:1], 72\n    s_lshr_b32 s93, s2, 3\n"
def epi(k):
    return f"""    s_waitcnt vmcnt(0)
    s_memrealtime s[60:61]
    s_waitcnt lgkmcnt(0)
    s_add_u32 s64, s94, {512*(1-k)}
    s_addc_u32 s65, s95, 0
    s_and_b32 s62, s93, 15
    s_or_b32 s62, s62, s3
    s_cmp_eq_u32 s62, 0
    s_cselect_b32 s66, 256, 0
    s_mov_b32 s67, 0x00020000
    s_not_b32 s62, s100
    s_not_b32 s63, s60
    v_mov_b32 v1, 0
    v_mov_b32 v4, s62
    v_mov_b32 v5, s100
    v_mov_b32 v6, s60
    v_mov_b32 v7, s63
    s_mov_b64 exec, 1
    buffer_atomic_umax v4, v1, s[64:67], 0 offen offset:{16*k}
    buffer_atomic_umax v5, v1, s[64:67], 0 offen offset:{16*k+4}
    buffer_atomic_umax v6, v1, s[64:67], 0 offen offset:{16*k+8}
    buffer_atomic_umax v7, v1, s[64:67], 0 offen offset:{16*k+12}
"""
parts = s.split("k2_kernel:\n")
a, b = parts[0], parts[1]
a = a.replace("k1_kernel:\n", "k1_kernel:\n" + pro())
a = a.replace("    s_endpgm\nk1_kernel_att:", epi(0) + "    s_endpgm\nk1_kernel_att:")
a = a.replace("    s_endpgm\nk1_kernel_att1:", epi(0) + "    s_endpgm\nk1_kernel_att1:")
a = a.replace("k1_kernel_done:", epi(0) + "k1_kernel_done:")
b = pro() + b.replace("k2_kernel_done:", epi(1) + "k2_kernel_done:")
open("diag1.s", "w").write(a + "k2_kernel:\n" + b)
```
